```python
import torch

def _softmax(x, axis=-1):
    return torch.softmax(x, dim=axis)
def _gelu(x):
    return torch.nn.functional.gelu(x, approximate="tanh")
def _silu(x):
    return torch.nn.functional.silu(x)
def _sigmoid(x):
    return torch.sigmoid(x)
def _layernorm(x, axis=-1, eps=1e-5):
    m = x.mean(dim=axis, keepdim=True)
    v = x.var(dim=axis, keepdim=True, unbiased=False)
    return (x - m) / torch.sqrt(v + eps)
def _scatter_add(tgt, idx, src, axis=0):
    return tgt.clone().index_add_(axis, idx, src)
def _segment_sum(src, seg, n):
    out = torch.zeros((n,) + src.shape[1:], dtype=src.dtype)
    return out.index_add_(0, seg, src)
def _pad(x, pw):
    flat = tuple(v for pair in reversed(pw) for v in pair)
    return torch.nn.functional.pad(x, flat)

kernel_name = 'recurrent_scan__mha_block_cached__moe_arch_mod__prompt'

def setup_inputs():

    _w = (lambda a: (lambda t: t.to(torch.bfloat16) if t.is_floating_point() else t)(torch.as_tensor(a)))
    def _A_setup():
        B, Sq, D = 1, 2048, 512
        H, Sk, Dh = 32, 2048, 128
        return {
            "x": _w((lambda *s: torch.randn(*s, dtype=torch.bfloat16) * 0.05)(B, Sq, D)),
            "k_cache": _w((lambda *s: torch.randn(*s, dtype=torch.bfloat16) * 1.6)(B, H, Sk, Dh)),
            "v_cache": _w((lambda *s: torch.randn(*s, dtype=torch.bfloat16) * 0.2)(B, H, Sk, Dh)),
            "wq": _w((lambda *s: torch.randn(*s, dtype=torch.bfloat16) * 1.6)(D, H * Dh) * (D ** -0.5)),
            "wo": _w((lambda *s: torch.randn(*s, dtype=torch.bfloat16) * 0.2)(H * Dh, D) * ((H * Dh) ** -0.5)),
        }
    _A_in = _A_setup()

    def _B_setup():
        B, S, D, F, C = 1, 2048, 512, 1376, 1
        return {
            "x": _w((lambda *s: torch.randn(*s, dtype=torch.bfloat16) * 0.05)(B, S, D)),
            "w_r": _w((lambda *s: torch.randn(*s, dtype=torch.bfloat16) * 0.2)(D)),
            "w_gate": _w((lambda *s: torch.randn(*s, dtype=torch.bfloat16) * 0.1)(D, F)),
            "w_up": _w((lambda *s: torch.randn(*s, dtype=torch.bfloat16) * 0.1)(D, F)),
            "w_down": _w((lambda *s: torch.randn(*s, dtype=torch.bfloat16) * 0.1)(F, D)),
        }
    _B_in = _B_setup()

    return {
        "A_x": _A_in["x"],
        "A_k_cache": _A_in["k_cache"],
        "A_v_cache": _A_in["v_cache"],
        "A_wq": _A_in["wq"],
        "A_wo": _A_in["wo"],
        "B_x": _B_in["x"],
        "B_w_r": _B_in["w_r"],
        "B_w_gate": _B_in["w_gate"],
        "B_w_up": _B_in["w_up"],
        "B_w_down": _B_in["w_down"],
    }

def reference(A_x, A_k_cache, A_v_cache, A_wq, A_wo, B_x, B_w_r, B_w_gate, B_w_up, B_w_down):
    def _A_ref(x, k_cache, v_cache, wq, wo):
        B, Sq, D = x.shape
        H, Dh = 32, 128
        q = (lambda x, *d: x.permute(*d))((x @ wq).reshape(B, Sq, H, Dh), 0, 2, 1, 3)
        scores = torch.einsum("bhqd,bhkd->bhqk", q, k_cache) * (Dh ** -0.5)
        p = _softmax(scores, axis=-1)
        o = torch.einsum("bhqk,bhkd->bhqd", p, v_cache)
        return (lambda x, *d: x.permute(*d))(o, 0, 2, 1, 3).reshape(B, Sq, H * Dh) @ wo

    def _B_ref(x, w_r, w_gate, w_up, w_down):
        B, S, D = x.shape
        C = 1
        r = x @ w_r
        idx = torch.argsort(-r, axis=-1)[:, :C]
        idx_e = (lambda x, n, axis: torch.repeat_interleave(x, n, dim=axis))(idx.reshape(B, C, 1), D, axis=2)
        x_sel = (lambda x, i, axis: torch.take_along_dim(x, i, dim=axis))(x, idx_e, axis=1)
        g = _silu(x_sel @ w_gate)
        u = x_sel @ w_up
        y = (g * u) @ w_down
        r_sel = _sigmoid((lambda x, i, axis: torch.take_along_dim(x, i, dim=axis))(r, idx, axis=1))
        y = y * r_sel.reshape(B, C, 1)
        b_off = (torch.arange(B) * S).reshape(B, 1)
        flat_idx = (idx + b_off).reshape(B * C)
        zero = (x * 0.0).reshape(B * S, D)
        upd = _scatter_add(zero, flat_idx, y.reshape(B * C, D), axis=0)
        return x + upd.reshape(B, S, D)

    x = A_x
    xn = _layernorm(x, axis=-1)
    s = _A_ref(xn, A_k_cache, A_v_cache, A_wq, A_wo)
    g = _silu(_B_ref(xn, B_w_r, B_w_gate, B_w_up, B_w_down))
    return x + s * g
```

```python
import re

def rng(p, i, n=1):
    return f"{p}{i}" if n == 1 else f"{p}[{i}:{i+n-1}]"
def v(i, n=1): return rng("v", i, n)
def a(i, n=1): return rng("a", i, n)
def s(i, n=1): return rng("s", i, n)

TRANS = ("v_exp_f32", "v_log_f32", "v_rcp_f32", "v_rsq_f32", "v_sqrt_f32", "v_sin_f32", "v_cos_f32")
RMW = ("v_fmac_f32", "v_writelane_b32", "v_fmac_f32_dpp")

_reg = re.compile(r"^(-?)(abs\()?\|?([vas])(\d+|\[(\d+):(\d+)\])\|?\)?$")

def regs_of(tok):
    tok = tok.strip()
    if tok in ("vcc", "exec", "m0", "scc"):
        return [tok]
    if tok in ("vcc_lo", "vcc_hi"): return ["vcc"]
    if tok in ("exec_lo", "exec_hi"): return ["exec"]
    m = _reg.match(tok)
    if not m:
        return []
    p = m.group(3)
    if m.group(5) is not None:
        return [(p, k) for k in range(int(m.group(5)), int(m.group(6)) + 1)]
    return [(p, int(m.group(4)))]


class I:
    __slots__ = ("text", "op", "defs", "uses", "kind", "dpp", "need_vm", "need_lg", "vm", "lg",
                 "srcc", "srcab", "tag", "nops", "wide_store")
    def __init__(self, text, tag=None):
        self.text = text
        self.tag = tag
        self.need_vm = None; self.need_lg = None; self.vm = None; self.lg = None
        self.srcc = []; self.srcab = []; self.dpp = False; self.nops = 1; self.wide_store = False
        self.defs = []; self.uses = []
        t = text.split(";")[0].strip()
        if t.endswith(":"):
            self.op = "label"; self.kind = "label"; self.nops = 0; return
        if t.startswith("."):
            self.op = "dir"; self.kind = "label"; self.nops = 0; return
        parts = t.split(None, 1)
        op = parts[0]; self.op = op
        rest = parts[1] if len(parts) > 1 else ""
        ops = [x.strip() for x in rest.split(",")] if rest else []
        mods = ""
        if ops:
            last = ops[-1].split(None, 1)
            if "quad_perm" in rest:
                head, _, tail = rest.partition("quad_perm")
                ops = [x.strip() for x in head.split(",")]
                mods = "quad_perm" + tail
            else:
                ops[-1] = last[0]
                mods = last[1] if len(last) > 1 else ""
        base = op.replace("_e32", "").replace("_e64", "").replace("_dpp", "")
        R = lambda k: regs_of(ops[k]) if k < len(ops) else []
        allr = lambda k0: [r for x in ops[k0:] for r in regs_of(x)]
        if op.startswith("v_mfma"):
            self.kind = "mfma"
            self.defs = R(0); self.srcab = R(1) + R(2); self.srcc = R(3)
            self.uses = self.srcab + self.srcc
        elif op.startswith("v_cmp"):
            self.kind = "valu"; self.defs = R(0); self.uses = allr(1)
            if op.startswith("v_cmpx"): self.defs = self.defs + ["exec"]
        elif op.startswith("v_permlane") and "swap" in op:
            self.kind = "valu"; self.defs = R(0) + R(1); self.uses = R(0) + R(1)
        elif op in ("v_add_co_u32", "v_sub_co_u32", "v_addc_co_u32"):
            self.kind = "valu"; self.defs = R(0) + R(1); self.uses = allr(2)
        elif op == "v_nop":
            self.kind = "valu"
        elif op.startswith("v_"):
            self.kind = "trans" if base in TRANS else "valu"
            self.defs = R(0); self.uses = allr(1)
            if base in RMW or base == "v_cvt_pk_bf16_f32_hi": self.uses = self.uses + R(0)
            if any(k in mods for k in ("quad_perm", "row_", "wave_", "bank_mask")):
                self.dpp = True
                self.uses = self.uses + R(0)
            if op.startswith("v_div_fmas"): self.uses = self.uses + ["vcc"]
        elif op.startswith("ds_read") or op.startswith("ds_bpermute") or op.startswith("ds_swizzle"):
            self.kind = "ds_r"; self.defs = R(0); self.uses = allr(1)
        elif op.startswith("ds_write") or op.startswith("ds_or") or op.startswith("ds_add") or op.startswith("ds_max"):
            self.kind = "ds_w"; self.uses = allr(0)
        elif op.startswith("buffer_load") or op.startswith("global_load"):
            if " lds" in (" " + mods) or mods.endswith("lds"):
                self.kind = "dma"; self.uses = allr(0) + ["m0"]
            else:
                self.kind = "vm_ld"; self.defs = R(0); self.uses = allr(1)
                if "d16" in op: self.uses = self.uses + R(0)
        elif op.startswith("buffer_store") or op.startswith("global_store"):
            self.kind = "vm_st"; self.uses = allr(0)
            self.wide_store = ("x4" in op or "x3" in op)
        elif op.startswith("buffer_atomic") or op.startswith("global_atomic"):
            self.kind = "vm_st"; self.uses = allr(0)
            if "sc0" in mods:
                self.kind = "vm_ld"; self.defs = R(0)
        elif op.startswith("buffer_wbl2") or op.startswith("buffer_inv"):
            self.kind = "vm_st"
        elif op.startswith("s_load") or op in ("s_memtime", "s_memrealtime"):
            self.kind = "smem"; self.defs = R(0); self.uses = allr(1)
        elif op == "s_waitcnt":
            self.kind = "wait"
            m = re.search(r"vmcnt\((\d+)\)", rest); self.vm = int(m.group(1)) if m else None
            m = re.search(r"lgkmcnt\((\d+)\)", rest); self.lg = int(m.group(1)) if m else None
        elif op == "s_nop":
            self.kind = "nop"; self.nops = int(ops[0], 0) + 1
        elif op == "s_barrier":
            self.kind = "barrier"
        elif op.startswith("s_cbranch") or op in ("s_branch", "s_endpgm", "s_setprio", "s_sleep"):
            self.kind = "branch"
            if "vcc" in op: self.uses = ["vcc"]
            if "exec" in op: self.uses = ["exec"]
            if "scc" in op: self.uses = ["scc"]
        elif op.startswith("s_cmp"):
            self.kind = "salu"; self.defs = ["scc"]; self.uses = allr(0)
        elif op.startswith("s_"):
            self.kind = "salu"; self.defs = R(0); self.uses = allr(1)
            if "saveexec" in op: self.defs = self.defs + ["exec"]
            if op.startswith("s_bitcmp"):
                self.defs = ["scc"]; self.uses = allr(0)
            elif not (op.startswith("s_mov") or op.startswith("s_cselect") or op.startswith("s_mul") or op.startswith("s_getreg") or op.startswith("s_setreg")):
                self.defs = self.defs + ["scc"]
            if op.startswith("s_cselect") or op.startswith("s_addc") or op.startswith("s_subb"):
                self.uses = self.uses + ["scc"]
        else:
            raise ValueError("unknown op " + text)

    def __repr__(self): return self.text


def wait(vm=None, lg=None, vmn=None, lgn=None):
    w = I("s_waitcnt vmcnt(63) lgkmcnt(15)")
    w.need_vm = vm; w.need_lg = lg
    w.vm = vmn; w.lg = lgn
    fix_wait_text(w)
    return w

def fix_wait_text(w):
    parts = []
    if w.vm is not None: parts.append(f"vmcnt({w.vm})")
    if w.lg is not None: parts.append(f"lgkmcnt({w.lg})")
    w.text = "s_waitcnt " + " ".join(parts) if parts else "s_nop 0"

VMK = ("vm_ld", "vm_st", "dma")
LGK = ("ds_r", "ds_w", "smem")

def resolve_waits(traces):
    res = {}
    for tr in traces:
        vmseq = []; lgseq = []
        for ins in tr:
            if ins.kind in VMK: vmseq.append(ins)
            elif ins.kind in LGK: lgseq.append(ins)
            elif ins.kind == "wait":
                for need, seq, key, mx in ((ins.need_vm, vmseq, "vm", 63), (ins.need_lg, lgseq, "lg", 15)):
                    if need is None: continue
                    best = None
                    for nd in need:
                        idx = None
                        for k in range(len(seq) - 1, -1, -1):
                            if seq[k] is nd: idx = k; break
                        if idx is None: continue
                        n = len(seq) - 1 - idx
                        best = n if best is None else min(best, n)
                    if best is None: continue
                    best = min(best, mx)
                    cur = res.get((id(ins), key))
                    res[(id(ins), key)] = (ins, best if cur is None else min(cur[1], best))
    for (i_, key), (ins, n) in res.items():
        setattr(ins, key, n)
    for tr in traces:
        for ins in tr:
            if ins.kind == "wait" and (ins.need_vm is not None or ins.need_lg is not None):
                fix_wait_text(ins)


def validate(tr, name=""):
    errs = []
    vmq = []; lgq = []
    pos = 0
    last_w = {}
    last_srcc = {}
    last_wst = {}
    maxvm = 0; maxlg = 0
    def err(msg, ins):
        errs.append(f"{name}: {msg}: {ins.text}")
    for ins in tr:
        if ins.kind == "label": continue
        k = ins.kind
        touched = set(ins.defs) | set(ins.uses)
        for q in (vmq, lgq):
            for o in q:
                if o.defs and (set(o.defs) & touched):
                    if k in VMK + LGK and not (set(o.defs) & set(ins.uses)) and q is (vmq if k in VMK else lgq):
                        continue
                    err(f"touches reg of outstanding load [{o.text}]", ins)
        isv = k in ("valu", "trans")
        if ins.op.startswith("s_cbranch_scc") or ins.op.startswith("s_cselect"):
            w = last_w.get("scc")
            if not w or not (w[1].op.startswith("s_cmp") or w[1].op.startswith("s_bitcmp")):
                err(f"scc producer is not a compare [{w[1].text if w else None}]", ins)
        if ins.op.startswith("s_addc"):
            w = last_w.get("scc")
            if not w or not w[1].op.startswith("s_add_u32"):
                err("carry producer is not s_add_u32", ins)
        def dist(r):
            return pos - r[0] - 1 + 0
        for r in ins.uses:
            w = last_w.get(r)
            if not w: continue
            d = pos - w[0]
            p = w[1]
            pv = p.kind in ("valu", "trans")
            need = 0
            if p.kind == "mfma":
                if k == "mfma":
                    if r in ins.srcab: need = 8
                    elif r in ins.srcc:
                        need = 0 if (ins.srcc == p.defs) else 6
                elif isv or k in VMK + LGK: need = 8
            elif pv:
                if k == "mfma": need = 2
                if p.kind == "trans" and k == "valu": need = max(need, 1)
                if p.kind == "trans" and k in VMK + LGK: need = max(need, 1)
                if isv and ins.dpp and isinstance(r, tuple) and r[0] == "v": need = max(need, 2)
                if ins.op.startswith("v_permlane"): need = max(need, 2)
                if ins.op in ("v_readlane_b32", "v_readfirstlane_b32") and isinstance(r, tuple) and r[0] == "v":
                    need = max(need, 1)
                if (r == "vcc" or (isinstance(r, tuple) and r[0] == "s")):
                    if isv: need = max(need, 2)
                    if ins.op in ("v_readlane_b32", "v_writelane_b32"): need = max(need, 4)
                    if ins.op.startswith("v_div_fmas"): need = max(need, 4)
                    if k in VMK: need = max(need, 5)
                    if k in ("salu", "branch", "smem"): need = max(need, 4)
                if r == "exec":
                    need = max(need, 5)
            elif p.kind == "salu":
                if r == "m0" and k == "dma": need = 1
            if d < need:
                err(f"RAW hazard on {r} (have {d}, need {need}) after [{p.text}]", ins)
        w = last_w.get("exec")
        if w and w[1].kind in ("valu", "trans") and (k == "mfma" or ins.dpp or ins.op.startswith("v_permlane") or "lane" in ins.op):
            if pos - w[0] < 5: err("exec hazard", ins)
        for r in ins.defs:
            w = last_w.get(r)
            if w and w[1].kind == "mfma" and (isv or k in VMK + LGK):
                if pos - w[0] < 8: err(f"WAW hazard on {r} after mfma [{w[1].text}]", ins)
            if w and w[1].kind == "mfma" and k == "mfma" and not (ins.srcc == w[1].defs):
                if pos - w[0] < 6: err(f"mfma WAW on {r}", ins)
            if isv:
                c = last_srcc.get(r)
                if c is not None and pos - c < 3: err(f"WAR on srcC {r}", ins)
            c = last_wst.get(r)
            if c is not None and pos - c < 2: err(f"WAR on store data {r}", ins)
        if k == "wait":
            if ins.vm is not None:
                while len(vmq) > ins.vm: vmq.pop(0)
            if ins.lg is not None:
                if any(o.kind == "smem" for o in lgq) and ins.lg != 0:
                    err("smem outstanding with counted lgkmcnt", ins)
                while len(lgq) > ins.lg: lgq.pop(0)
        if k in VMK:
            vmq.append(ins); maxvm = max(maxvm, len(vmq))
            if len(vmq) > 63: err("vmcnt overflow", ins)
        if k in LGK:
            lgq.append(ins)
            n = sum(2 if (o.kind == "smem" and o.op != "s_load_dword") else 1 for o in lgq)
            maxlg = max(maxlg, n)
            if n > 15: err("lgkmcnt overflow", ins)
        pos += ins.nops
        if k in ("valu", "trans", "mfma", "salu"):
            for r in ins.defs: last_w[r] = (pos, ins)
        elif k in ("vm_ld", "ds_r", "smem"):
            for r in ins.defs: last_w.pop(r, None)
        if k == "mfma":
            for r in ins.srcc: last_srcc[r] = pos
        if ins.wide_store:
            for r in ins.uses[:4]: last_wst[r] = pos
    return errs


class Seq(list):
    def e(self, text, tag=None):
        if isinstance(text, I):
            self.append(text); return text
        i = I(text, tag); self.append(i); return i
    def es(self, block):
        out = []
        for ln in block.strip().split("\n"):
            ln = ln.strip()
            if ln and not ln.startswith(";"):
                out.append(self.e(ln))
        return out
    def text(self):
        return "\n".join((i.text if i.kind == "label" else "    " + i.text) for i in self) + "\n"


def srd(q, d, b, nbytes, off=None):
    if off is None:
        q.e(f"s_mov_b32 {s(d)}, {s(b)}")
        q.e(f"s_mov_b32 {s(d+1)}, {s(b+1)}")
    else:
        q.e(f"s_add_u32 {s(d)}, {s(b)}, {off}")
        q.e(f"s_addc_u32 {s(d+1)}, {s(b+1)}, 0")
    q.e(f"s_mov_b32 {s(d+2)}, {nbytes}")
    q.e(f"s_mov_b32 {s(d+3)}, 0x00020000")


def kernel_text(name, body, vgpr, agpr=0, sgpr=102):
    acc = (vgpr + 3) // 4 * 4
    nfv = acc + agpr if agpr else vgpr
    t = f".text\n.globl {name}\n.p2align 8\n.type {name},@function\n{name}:\n" + body
    d = (f".section .rodata,\"a\"\n.p2align 6\n.amdhsa_kernel {name}\n"
         f"  .amdhsa_next_free_vgpr {nfv}\n  .amdhsa_next_free_sgpr {sgpr}\n  .amdhsa_accum_offset {acc}\n"
         "  .amdhsa_group_segment_fixed_size 0\n  .amdhsa_kernarg_size 104\n  .amdhsa_user_sgpr_count 2\n"
         "  .amdhsa_user_sgpr_kernarg_segment_ptr 1\n  .amdhsa_system_sgpr_workgroup_id_x 1\n.end_amdhsa_kernel\n")
    return t, d
```

```python
from asmlib import *
from gen_small import *

MF = "v_mfma_f32_16x16x32_bf16"
P0 = 0
SR = 128
NM = 160
LM = 176
ONES = 192
LV = 196
KA = 204
VA = 208
KD = 216
VD = 220
VL16 = 222
VWQ = 223
WA = 196
WF = 224
QF = 128
KF_ = 192
VF = 224
S_W = 3
SRD_K, SRD_V, SRD_W, SRD_X, SRD_O = 8, 12, 16, 20, 24
S_WB = 30
S_K0, S_K1, S_V0, S_V1 = 31, 32, 33, 34
S_CNT = 35
S_C = 36
S_FB = 37
S_Q = 38
S_WQ = 42
SLOT = 32768
LDS_FLAG = 4 * SLOT
C_SCALE = 0x3e0293ee

def Preg(buf, u, qt): return P0 + buf * 64 + (u * 4 + qt) * 4
def Sreg(kb, qt): return SR + (kb & 1) * 16 + qt * 4
def Oreg(db, qt): return (db * 4 + qt) * 4
def Qreg(qt, t): return QF + (qt * 4 + t) * 4
def Kf(kb, t): return KF_ + (kb & 1) * 16 + 4 * t
def Vf(db, u): return VF + (db & 1) * 16 + 4 * u


class Sched:
    def __init__(self, n, cap=2, modulo=False):
        self.n = n; self.cap = [cap] * n; self.mod = modulo
        self.sc = [[] for _ in range(n)]; self.mem = [[] for _ in range(n)]; self.va = [[] for _ in range(n)]
        self.used = [0] * n
        self.tail = []
    def _g(self, g): return g % self.n if self.mod else g
    def free(self, g): return self.cap[self._g(g)] - self.used[self._g(g)]
    def put_sc(self, g, it, exact=False, maxper=1):
        while True:
            if not self.mod and g >= self.n:
                self.tail.append(it); return g
            k = self._g(g)
            if exact or (len(self.sc[k]) < maxper and not self.mem[k]):
                self.sc[k].append((g, it)); return g
            g += 1
    def put_mem(self, g, it, cost=1, exact=True):
        while True:
            if not self.mod and g >= self.n:
                self.tail.append(it); return g
            k = self._g(g)
            if self.free(g) >= cost and (exact or not self.sc[k]):
                self.mem[k].append((g, it)); self.used[k] += cost; return g
            assert not exact, f"mem gap {g} full"
            g += 1
    def put_va(self, g, it, cost=1, exact=False):
        while True:
            if not self.mod and g >= self.n:
                self.tail.append(it); return g
            k = self._g(g)
            if self.free(g) >= cost:
                self.va[k].append((g, it)); self.used[k] += cost; return g
            assert not exact, f"valu gap {g} full"
            g += 1
    def gap(self, k):
        return self.sc[k] + self.mem[k] + self.va[k]


def emit_linear(q, mf, sch):
    for k, m in enumerate(mf):
        q.e(m)
        for g, it in sch.gap(k): q.e(it)
    for it in sch.tail: q.e(it)


def qk_mfma(kb, qt, t, czero=False):
    d = v(Sreg(kb, qt), 4)
    c = d if t else ("0" if czero else v(NM + 4 * qt, 4))
    return I(f"{MF} {d}, {a(Kf(kb, t), 4)}, {a(Qreg(qt, t), 4)}, {c}")
def pv_mfma(pbuf, db, qt, u):
    d = a(Oreg(db, qt), 4)
    return I(f"{MF} {d}, {a(Vf(db, u), 4)}, {v(Preg(pbuf, u, qt), 4)}, {d}")
def sum_mfma(pbuf, qt, u):
    d = v(LM + 4 * qt, 4)
    return I(f"{MF} {d}, {v(ONES, 4)}, {v(Preg(pbuf, u, qt), 4)}, {d}")
def k_read(slot, kb, t):
    return I(f"ds_read_b128 {a(Kf(kb, t), 4)}, {v(KA + t)} offset:{slot * SLOT + kb * 4096}")
def v_read(slot, db, u, x):
    return I(f"ds_read_b64_tr_b16 {a(Vf(db, u) + 2 * x, 2)}, {v(VA + db)} offset:{slot * SLOT + u * 8192 + x * 4096}")
def exp_i(kb, e):
    r = Sreg(kb, e >> 2) + (e & 3)
    return I(f"v_exp_f32 {v(r)}, {v(r)}")
def cvt_i(pbuf, kb, e):
    r = Sreg(kb, e >> 2) + (e & 3)
    d = Preg(pbuf, kb >> 1, e >> 2) + 2 * (kb & 1) + ((e & 3) >> 1)
    return I(f"v_cvt_pk_bf16_f32 {v(d)}, {v(r)}, {v(r + 1)}")
def add_i(kb, e):
    r = Sreg(kb, e >> 2) + (e & 3)
    l = LV + 2 * (e >> 2) + (e & 1)
    return I(f"v_add_f32 {v(l)}, {v(l)}, {v(r)}")
def k_dma(j):
    return I(f"buffer_load_dwordx4 {v(KD + (j & 3))}, {s(SRD_K, 4)}, {s(S_K0 + (j >> 2))} offen offset:{(j & 3) * 1024} lds")
def v_dma(j):
    return I(f"buffer_load_dwordx4 {v(VD + (j & 1))}, {s(SRD_V, 4)}, {s(S_V0 + (j >> 2))} offen offset:{(j & 3) * 1024} lds")
def m0_set(off):
    return I(f"s_add_u32 m0, {s(S_WB)}, {off}")


def gen_k1(nu=2, dma_pos=None, dbg=None):
    q = Seq()
    q.e("s_cmp_ge_u32 s2, 256")
    q.e("s_cbranch_scc1 K1_END")
    q.e(f"s_load_dwordx2 s[4:5], s[0:1], {K_WS}")
    q.e(f"s_load_dwordx2 s[6:7], s[0:1], {K_WQ}")
    q.e(f"s_load_dwordx4 s[44:47], s[0:1], {K_K}")
    q.e("v_lshrrev_b32 v1, 6, v0")
    q.e("v_and_b32 v2, 63, v0")
    q.e(f"v_readfirstlane_b32 s{S_W}, v1")
    q.e("s_and_b32 s28, s2, 31")
    q.e("s_lshr_b32 s29, s2, 5")
    q.e("v_lshrrev_b32 v3, 4, v2")
    q.e("v_and_b32 v4, 15, v2")
    q.e(f"v_lshlrev_b32 v{VL16}, 4, v2")
    q.e("v_lshlrev_b32 v5, 2, v3")
    q.e("v_xor_b32 v5, v4, v5")
    q.e("v_lshlrev_b32 v5, 4, v5")
    q.e("v_lshl_add_u32 v6, v1, 5, v3")
    q.e(f"v_lshl_add_u32 v{VWQ}, v6, 13, v5")
    q.e(f"s_lshl_b32 s{S_WB}, s{S_W}, 13")
    q.e("s_lshl_b32 s43, s28, 8")
    q.e("s_waitcnt lgkmcnt(0)")
    q.e(f"s_add_u32 s{SRD_W}, s6, s43")
    q.e(f"s_addc_u32 s{SRD_W+1}, s7, 0")
    q.e(f"s_sub_u32 s{SRD_W+2}, {4*MB}, s43")
    q.e(f"s_mov_b32 s{SRD_W+3}, 0x00020000")
    def wq_dma(z_sc, z_mem, rho):
        out = []
        for i in range(8):
            z_sc(I(f"s_mov_b32 s{S_WQ}, {rho * MB + i * 32768}"))
            z_sc(m0_set((1 + rho) * SLOT + i * 1024))
            out.append(z_mem(I(f"buffer_load_dwordx4 v{VWQ}, {s(SRD_W,4)}, s{S_WQ} offen lds")))
        return out
    def lin_dma(ins):
        q.e("s_nop 0"); q.e(ins); return ins
    wq = {}
    wq[0] = wq_dma(q.e, lin_dma, 0)
    q.e("s_lshl_b32 s43, s29, 2")
    q.e(f"s_add_u32 s43, s43, s{S_W}")
    q.e("s_lshl_b32 s48, s43, 16")
    srd(q, SRD_X, 4, 65536, off="s48")
    XQB = [("a", 0), ("a", 64), ("a", 192), ("v", 128)]
    def xq_reg(rho, qt, tt):
        p, b = XQB[rho]
        return rng(p, b + (qt * 4 + tt) * 4, 4)
    def xq_load(rho, qt, tt):
        return I(f"buffer_load_dwordx4 {xq_reg(rho, qt, tt)}, v{VL16}, {s(SRD_X,4)}, s{S_Q+qt} offen offset:{tt*1024}")
    def xq_soff(rho, qt):
        return I(f"s_mov_b32 s{S_Q+qt}, {qt*16384 + rho*4096}")
    xq = {}
    def xq_lin(rho):
        for qt in range(4): q.e(xq_soff(rho, qt))
        xq[rho] = [q.e(xq_load(rho, qt, tt)) for qt in range(4) for tt in range(4)]
    xq_lin(0)
    wq[1] = wq_dma(q.e, lin_dma, 1)
    xq_lin(1)
    wq[2] = wq_dma(q.e, lin_dma, 2)
    q.e("s_lshl_b32 s48, s28, 19")
    srd(q, SRD_K, 44, 524288, off="s48")
    srd(q, SRD_V, 46, 524288, off="s48")
    q.e("s_lshl_b32 s48, s43, 19")
    q.e("s_lshl_b32 s49, s28, 12")
    q.e("s_add_u32 s48, s48, s49")
    q.e(f"s_add_u32 s48, s48, {WS_OF}")
    srd(q, SRD_O, 4, 3 * 131072 + 4096, off="s48")
    q.e(f"s_mov_b32 s{S_C}, {C_SCALE}")
    q.e(f"s_mov_b32 s{S_FB}, 0")
    q.e("v_xor_b32 v5, v3, v4")
    q.e("v_lshlrev_b32 v6, 8, v4")
    for t in range(4):
        q.e(f"v_xor_b32 v7, {4*t}, v5")
        q.e(f"v_lshl_add_u32 v{KA+t}, v7, 4, v6")
    q.e("v_lshrrev_b32 v5, 2, v2")
    q.e("v_and_b32 v6, 7, v5")
    q.e("v_and_b32 v7, 3, v2")
    q.e("v_lshlrev_b32 v8, 8, v5")
    q.e("v_lshl_add_u32 v8, v7, 3, v8")
    q.e(f"v_add_u32 v8, {2*SLOT}, v8")
    for db in range(8):
        q.e(f"v_xor_b32 v9, {db}, v6")
        q.e(f"v_lshl_add_u32 v{VA+db}, v9, 5, v8")
    q.e("v_lshlrev_b32 v8, 13, v1")
    q.e("v_lshl_add_u32 v8, v3, 8, v8")
    for j in range(4):
        q.e(f"v_add_u32 v9, {4*j}, v3")
        q.e("v_xor_b32 v9, v9, v4")
        q.e(f"v_lshl_add_u32 v{KD+j}, v9, 4, v8")
    for j in range(2):
        q.e(f"v_add_u32 v9, {4*j}, v3")
        q.e("v_lshlrev_b32 v9, 1, v9")
        q.e("v_xor_b32 v9, v9, v4")
        q.e(f"v_lshl_add_u32 v{VD+j}, v9, 4, v8")
    q.e("v_and_b32 v6, 3, v5")
    q.e("v_lshl_add_u32 v8, v3, 3, v6")
    q.e("v_lshlrev_b32 v8, 8, v8")
    q.e("v_lshl_add_u32 v8, v7, 4, v8")
    q.e(f"v_add_u32 v8, {SLOT}, v8")
    for s_ in range(4):
        q.e(f"v_xor_b32 v9, {s_}, v6")
        q.e(f"v_lshl_add_u32 v{WA+s_}, v9, 6, v8")
    q.e(f"s_mov_b32 s{S_K0}, 0")
    q.e(f"s_mov_b32 s{S_K1}, 4096")
    q.e(f"s_mov_b32 s{S_V0}, 0")
    q.e(f"s_mov_b32 s{S_V1}, 4096")

    def w_read(b, tt, x):
        dt = b & 7
        return I(f"ds_read_b64_tr_b16 {v(WF + (b & 1) * 16 + 4 * tt + 2 * x, 2)}, {v(WA + (dt >> 1))} "
                 f"offset:{tt * 8192 + x * 1024 + 8 * (dt & 1)}")
    q.e(wait(vm=wq[0]))
    q.e("s_barrier")
    for tt in range(4):
        for x in range(2): q.e(w_read(0, tt, x))
    q.e(wait(vm=xq[0], lgn=0))
    mf = []
    for b in range(32):
        rho, dt = b >> 3, b & 7
        for qt in range(4):
            for tt in range(4):
                d = v((dt * 4 + qt) * 4, 4)
                c = "0" if (rho == 0 and tt == 0) else d
                mf.append(I(f"{MF} {d}, {v(WF + (b & 1) * 16 + 4 * tt, 4)}, {xq_reg(rho, qt, tt)}, {c}"))
    sch = Sched(512)
    for b in range(31):
        G = 16 * b
        k = 0
        for gp in (1, 3, 5, 7):
            for x in range(2):
                sch.put_mem(G + gp, w_read(b + 1, (gp - 1) // 2, x))
        if (b & 7) == 6:
            for s_ in range(4):
                sch.put_va(G + 8, I(f"v_add_u32 v{WA+s_}, {SLOT}, v{WA+s_}"))
    def gap_issuer(start):
        st = {"g": start}
        def nxt():
            while (st["g"] % 16) in (0, 1, 3, 5, 7, 14, 15) or sch.free(st["g"]) < 2 or sch.sc[st["g"]]:
                st["g"] += 1
            return st["g"]
        def z_sc(ins):
            g = st["g"]
            while sch.mem[g] or sch.sc[g] or (g % 16) in (0, 14, 15): g += 1
            sch.put_sc(g, ins, exact=True); st["g"] = g + 1; return ins
        def z_mem(ins):
            g = nxt(); sch.put_mem(g, ins, cost=2); st["g"] = g + 1; return ins
        return z_sc, z_mem, st
    z_sc, z_mem, st = gap_issuer(2)
    for qt in range(4): z_sc(xq_soff(2, qt))
    xq[2] = [z_mem(xq_load(2, qt, tt)) for qt in range(4) for tt in range(4)]
    wq[3] = wq_dma(z_sc, z_mem, 3)
    assert st["g"] < 128 - 18, st
    z_sc, z_mem, st = gap_issuer(128 + 2)
    for qt in range(4): z_sc(xq_soff(3, qt))
    xq[3] = [z_mem(xq_load(3, qt, tt)) for qt in range(4) for tt in range(4)]
    def kv_dma(z_sc, z_mem, isk, slot):
        out = []
        for j in range(8):
            if j % 4 == 0: z_sc(m0_set(slot * SLOT + (j >> 2) * 4096))
            out.append(z_mem(k_dma(j) if isk else v_dma(j)))
        r0 = S_K0 if isk else S_V0
        z_sc(I(f"s_add_u32 s{r0}, s{r0}, {SLOT}"))
        z_sc(I(f"s_add_u32 s{r0+1}, s{r0+1}, {SLOT}"))
        return out
    k0 = kv_dma(z_sc, z_mem, True, 0)
    assert st["g"] < 256 - 18, st
    z_sc, z_mem, st = gap_issuer(256 + 2)
    k1 = kv_dma(z_sc, z_mem, True, 1)
    v0 = kv_dma(z_sc, z_mem, False, 2)
    assert st["g"] < 384 - 18, st
    for b in range(31):
        G = 16 * b
        rho = b >> 3
        if (b & 7) == 6 and rho < 3:
            need = wq[rho + 1] + (k0 if rho == 2 else [])
            sch.put_sc(G + 14, wait(vm=need, lgn=0), exact=True)
            sch.put_sc(G + 15, I("s_barrier"), exact=True)
        elif (b & 7) == 7:
            sch.put_sc(G + 14, wait(vm=xq[rho + 1], lgn=0), exact=True)
        else:
            sch.put_sc(G + 14, wait(lgn=0), exact=True)
    for r in range(128):
        sch.put_va(256 + 1, I(f"v_accvgpr_write_b32 {a(r)}, 0"))
    kr0 = [k_read(0, 0, t) for t in range(4)]
    for t in range(4): sch.put_mem(16 * 31 + 1 + 2 * (t >> 1), kr0[t])
    for dt in range(8):
        for qt in range(4):
            r = (dt * 4 + qt) * 4
            g0 = 384 + dt * 16 + qt * 4 + 3 + 6
            d = Qreg(qt, dt >> 1) + 2 * (dt & 1)
            for e in range(4):
                g0 = sch.put_va(g0, I(f"v_mul_f32 {v(r+e)}, s{S_C}, {v(r+e)}"))
            g0 = sch.put_va(g0, I(f"v_cvt_pk_bf16_f32 {v(r)}, {v(r)}, {v(r+1)}"))
            g0 = sch.put_va(g0, I(f"v_cvt_pk_bf16_f32 {v(r+2)}, {v(r+2)}, {v(r+3)}"))
            g0 = sch.put_va(g0, I(f"v_accvgpr_write_b32 {a(d)}, {v(r)}"))
            g0 = sch.put_va(g0, I(f"v_accvgpr_write_b32 {a(d+1)}, {v(r+2)}"))
    emit_linear(q, mf, Sched(512)) if False else None
    for k, m in enumerate(mf):
        q.e(m)
        for g, it in sch.gap(k): q.e(it)
    q.e("s_nop 3")
    for it in sch.tail: q.e(it)
    for r in range(4): q.e(f"v_mov_b32 v{ONES+r}, 0x3f803f80")

    wstart = []; pos = 0; mkeys = []
    sumwin = {3: 0, 4: 1, 5: 2, 6: 3}
    for w in range(8):
        wstart.append(pos)
        for qt in range(4):
            for t in range(4): mkeys.append(("qk", w, qt, t))
        for qt in range(4):
            for u in range(4): mkeys.append(("pv", w, qt, u))
        pos += 32
        if w in sumwin:
            for u in range(nu): mkeys.append(("sum", sumwin[w], u))
            pos += nu
    PL = pos
    wstart.append(PL)
    def G(w, g):
        return wstart[w & 7] + (PL if w >= 8 else 0) + g
    ss = Sched(PL, modulo=True)
    place = {}
    for kb in range(8):
        for e in range(16):
            p = 8 + 2 * e
            g = G(kb, p) if p < 32 else G(kb + 1, p - 32)
            place[("exp", kb, e)] = ss.put_va(g, ("exp", kb, e), cost=2, exact=True)
    for w in range(8):
        for t in range(4):
            place[("kr", w + 1, t)] = ss.put_mem(G(w, 17 + 2 * (t >> 1)), ("kr", w + 1, t))
        for u in range(4):
            for x in range(2):
                g = G(w, 21 + 2 * u) if u < 2 else G(w + 1, 2 * u - 3)
                place[("vr", w + 1, u, x)] = ss.put_mem(g, ("vr", w + 1, u, x))
    if dma_pos is None:
        dma_pos = [(w, g) for w in range(4) for g in (5, 9, 25, 29)]
    for j, (w, g) in enumerate(dma_pos):
        isk = j < 8
        if j % 4 == 0:
            ss.put_sc(G(w, g - 1), ("m0", isk, (j >> 2) & 1), exact=True)
        ss.put_mem(G(w, g), ("dma", isk, j & 7), cost=2)
        if j % 8 == 7:
            ss.put_sc(G(w, g + 1), ("soff", isk, 0), exact=True)
            ss.put_sc(G(w, g + 3), ("soff", isk, 1))
    for w in range(8):
        if w == 7:
            ss.put_sc(G(w, 12), ("waitbar",), exact=True)
            ss.put_sc(G(w, 14), ("bar",), exact=True)
        else:
            ss.put_sc(G(w, 14), ("waitv", w), exact=True)
        ss.put_sc(G(w, 30), ("waitk", w + 1), exact=True)
    ss.put_sc(G(5, 2), ("cnt",))
    fifo = []
    for kb in range(8):
        for e in range(16):
            ge = place[("exp", kb, e)]
            if kb >= 2 * nu: fifo.append((ge + 1, ("add", kb, e)))
            if e & 1: fifo.append((ge + 1, ("cvt", kb, e - 1)))
    fifo.sort(key=lambda z: z[0])
    rot = [f for f in fifo if f[1][1] >= 6] + [f for f in fifo if f[1][1] < 6]
    for ge, key in rot:
        place[key] = ss.put_va(ge, key)
    for key, g in place.items():
        if key[0] in ("add", "cvt", "exp"):
            kb, e = key[1], key[2]
            dl = G(kb + 2, 4 * (e >> 2))
            assert g < dl, (key, g, dl)
        if key[0] == "cvt":
            kb, e = key[1], key[2]
            dl = G(8, 16 + 4 * (e >> 2) + (kb >> 1)) - 1
            assert g < dl, (key, g, dl)
    wrap = {k for k, g in place.items() if g >= PL}
    util = sum(ss.used)
    info = dict(PL=PL, used=util, cap=2 * PL, wrap=sorted(wrap))

    reads = {}
    def mk(key, par):
        kind = key[0]
        if kind == "qk": return qk_mfma(key[1], key[2], key[3])
        if kind == "pv": return pv_mfma(par, key[1], key[2], key[3])
        if kind == "sum": return sum_mfma(par, key[1], key[2])
        if kind == "exp": return exp_i(key[1], key[2])
        if kind == "cvt": return cvt_i(1 - par, key[1], key[2])
        if kind == "add": return add_i(key[1], key[2])
        if kind == "kr":
            kb = key[1]
            i = k_read((1 - par) if kb < 8 else par, kb & 7, key[2])
            reads.setdefault((par, "k", kb), []).append(i); return i
        if kind == "vr":
            db = key[1]
            i = v_read(par if db < 8 else 1 - par, db & 7, key[2], key[3])
            reads.setdefault((par, "v", db), []).append(i); return i
        if kind == "dma": return k_dma(key[2]) if key[1] else v_dma(key[2])
        if kind == "m0":
            slot = par if key[1] else 2 + (1 - par)
            return m0_set(slot * SLOT + key[2] * 4096)
        if kind == "soff":
            r = (S_K0 if key[1] else S_V0) + key[2]
            return I(f"s_add_u32 s{r}, s{r}, {SLOT}")
        if kind == "waitbar": return wait(vmn=0, lgn=0)
        if kind == "bar": return I("s_barrier")
        if kind == "waitv":
            w = key[1]
            return wait(lg=reads.setdefault((par, "v", w) if w else (1 - par, "v", 8), []))
        if kind == "waitk": return wait(lg=reads.setdefault((par, "k", key[1]), []))
        if kind == "cnt":
            return I(f"s_add_u32 s{S_CNT}, s{S_CNT}, 1") if par == 1 else I(f"s_cmp_eq_u32 s{S_CNT}, 7")
        raise KeyError(key)

    def body(par):
        z = Seq()
        for k in range(PL):
            z.e(mk(mkeys[k], par))
            for g, key in ss.gap(k):
                z.e(mk(key, par if g < PL else 1 - par))
        return z

    e0 = Seq()
    e0.e("K1_QK0:")
    for r in range(8): e0.e(f"v_mov_b32 v{LV+r}, 0")
    for r in range(16): e0.e(f"v_mov_b32 v{LM+r}, 0")
    e0.e(f"s_mov_b32 s{S_CNT}, 0")
    e0.e("s_waitcnt lgkmcnt(0)")
    kr1 = [k_read(0, 1, t) for t in range(4)]
    for qt in range(4):
        for t in range(4):
            e0.e(qk_mfma(0, qt, t, czero=True))
            if qt == 0: e0.e(kr1[t])
    e0.e(f"s_cmp_lg_u32 s{S_FB}, 0")
    e0.e("s_cbranch_scc1 K1_HAVEM")
    mx = Seq()
    T = WF
    for qt in range(4):
        if qt == 3: mx.e("s_nop 1")
        r = Sreg(0, qt)
        mx.e(f"v_max3_f32 v{T+qt}, v{r}, v{r+1}, v{r+2}")
        mx.e(f"v_max_f32 v{T+qt}, v{T+qt}, v{r+3}")
    for sw in ("v_permlane16_swap_b32", "v_permlane32_swap_b32"):
        for qt in range(4): mx.e(f"v_mov_b32 v{T+4+qt}, v{T+qt}")
        for qt in range(4): mx.e(f"{sw} v{T+qt}, v{T+4+qt}")
        for qt in range(4): mx.e(f"v_max_f32 v{T+qt}, v{T+qt}, v{T+4+qt}")
    for qt in range(4):
        for r in range(4): mx.e(f"v_sub_f32 v{NM+4*qt+r}, 0, v{T+qt}")
    e1 = Seq()
    e1.e("K1_HAVEM:")
    e1.e("s_nop 5")
    for r in range(16): e1.e(f"v_add_f32 v{SR+r}, v{SR+r}, v{NM+r}")
    e1.e("s_waitcnt lgkmcnt(0)")
    mf = [qk_mfma(kb, qt, t) for kb in range(1, 8) for qt in range(4) for t in range(4)]
    n = len(mf)
    ps = Sched(n, cap=4)
    GP = lambda kb, g: (kb - 1) * 16 + g
    for kb in range(1, 7):
        rs = [k_read(0, kb + 1, t) for t in range(4)]
        for t in range(4): ps.put_mem(GP(kb, 1 + 2 * (t >> 1)), rs[t])
        if kb < 6: ps.put_sc(GP(kb, 14), wait(lg=rs), exact=True)
    ps.put_sc(GP(6, 14), wait(vmn=0, lgn=0), exact=True)
    ps.put_sc(GP(6, 15), I("s_barrier"), exact=True)
    for t in range(4): ps.put_mem(GP(7, 1 + 2 * (t >> 1)), mk(("kr", 8, t), 1))
    for u in range(4):
        for x in range(2):
            if ("vr", 8, u, x) not in wrap: ps.put_mem(GP(7, 5 + 2 * u), mk(("vr", 8, u, x), 1))
    pl2 = {}
    cur = 0
    for kb in range(8):
        for e in range(16):
            rdy = 0 if kb == 0 else GP(kb, 4 * (e >> 2) + 3 + 4)
            keys = [("exp", kb, e)] + ([("add", kb, e)] if kb >= 2 * nu else []) + ([("cvt", kb, e - 1)] if e & 1 else [])
            for key in keys:
                if key in wrap: continue
                if key[0] == "exp":
                    cur = ps.put_va(max(cur, rdy), mk(key, 1), cost=2); pl2[key] = cur
                else:
                    pl2[key] = ps.put_va(pl2[("exp", kb, e)] + 1, mk(key, 1))
    for key, g in pl2.items():
        kb, e = key[1], key[2]
        if kb + 2 < 8: assert g < GP(kb + 2, 4 * (e >> 2)), (key, g)
    for k, m in enumerate(mf):
        e1.e(m)
        for g, it in ps.gap(k): e1.e(it)
    e1.e("s_nop 4")
    tl = [i for i in ps.tail if i.kind == "trans"] + [I("s_nop 0")] + [i for i in ps.tail if i.kind != "trans"]
    for it in tl: e1.e(it)
    e1.e(mk(("waitk", 8), 1))

    b0 = Seq(); b0.e("K1_LOOP:"); b0.extend(body(0)); b0.e("s_cbranch_scc1 K1_EPI")
    b1 = body(1); b1.e("s_branch K1_LOOP")

    ep = Seq()
    ep.e("K1_EPI:")
    mf = [sum_mfma(1, qt, u) for qt in range(4) for u in range(nu)]
    ns = len(mf)
    mf += [pv_mfma(1, db, qt, u) for db in range(8) for qt in range(4) for u in range(4)]
    es = Sched(len(mf), cap=2)
    GE = lambda db, g: ns + 16 * db + g
    pre = Seq()
    wl = sorted(wrap, key=lambda k: place[k])
    vr0 = []
    for key in wl:
        if key[0] == "vr": vr0.append(pre.e(mk(key, 0)))
    for key in wl:
        if key[0] == "exp": pre.e(mk(key, 0))
    pre.e("s_nop 0")
    for key in wl:
        if key[0] == "cvt": pre.e(mk(key, 0))
    for key in wl:
        if key[0] == "add": pre.e(mk(key, 0))
    pre.e("s_waitcnt lgkmcnt(0)")
    for db in range(7):
        rs = []
        for u in range(4):
            for x in range(2):
                i = v_read(1, db + 1, u, x); rs.append(i)
                es.put_mem(GE(db, 1 + 2 * u), i)
        es.put_sc(GE(db, 14), wait(lg=rs), exact=True)
    RL = WF; TT = WF + 4
    g = 0
    def fin(text, gap=0):
        nonlocal g
        g = es.put_va(g + gap, I(text), cost=2 if "rcp" in text else 1)
    for qt in range(4): fin(f"v_add_f32 v{RL+qt}, v{LV+2*qt}, v{LV+2*qt+1}")
    for sw in ("v_permlane16_swap_b32", "v_permlane32_swap_b32"):
        for qt in range(4): fin(f"v_mov_b32 v{TT+qt}, v{RL+qt}")
        for qt in range(4): fin(f"{sw} v{RL+qt}, v{TT+qt}", gap=1 if qt == 0 else 0)
        for qt in range(4): fin(f"v_add_f32 v{RL+qt}, v{RL+qt}, v{TT+qt}")
    g = max(g, ns + 4)
    if nu:
        for qt in range(4): fin(f"v_add_f32 v{RL+qt}, v{RL+qt}, v{LM+4*qt}")
    es.put_sc(0, I("s_mov_b32 s50, 0x4e800000"))
    for qt in range(4): fin(f"v_cmp_nle_f32 s[{52+2*qt}:{53+2*qt}], v{RL+qt}, s50")
    for qt in range(4): fin(f"v_rcp_f32 v{RL+qt}, v{RL+qt}")
    g2 = g + 1
    g2 = es.put_sc(g2, I("s_or_b64 s[52:53], s[52:53], s[54:55]")) + 1
    g2 = es.put_sc(g2, I("s_or_b64 s[56:57], s[56:57], s[58:59]")) + 1
    g2 = es.put_sc(g2, I("s_or_b64 s[52:53], s[52:53], s[56:57]")) + 1
    g2 = es.put_sc(g2, I("s_or_b32 s52, s52, s53")) + 1
    g2 = es.put_sc(g2, I(f"s_lshl_b32 s53, s{S_W}, 2")) + 1
    g2 = es.put_sc(g2, I(f"s_add_u32 s53, s53, {LDS_FLAG}")) + 1
    g2 = es.put_va(g2, I(f"v_mov_b32 v{TT}, s52"))
    g2 = es.put_va(g2, I(f"v_mov_b32 v{TT+1}, s53"))
    g2 = es.put_va(g2, I(f"v_mov_b32 v{TT+2}, {LDS_FLAG}")) + 1
    fw = I(f"ds_write_b32 v{TT+1}, v{TT}")
    g2 = es.put_mem(g2, fw, exact=False) + 4
    g2 = es.put_sc(g2, wait(lg=[fw])) + 1
    g2 = es.put_sc(g2, I("s_barrier")) + 1
    FL = WF + 8
    fr = I(f"ds_read_b128 {v(FL,4)}, v{TT+2}")
    g2 = es.put_mem(g2, fr, exact=False)
    for qt in range(4): es.put_sc(2 + qt, I(f"s_mov_b32 s{S_Q+qt}, {qt*131072}"))
    gn = g + 2
    grp = 0
    for s_ in range(4):
        for qt in range(4):
            st_ = (grp % 5) * 12; grp += 1
            rdy = GE(2 * s_ + 1, 4 * qt + 3 + 5)
            gn = max(gn, rdy)
            for x in range(2):
                for r in range(4):
                    gn = es.put_va(gn, I(f"v_accvgpr_read_b32 v{st_+4+4*x+r}, {a(Oreg(2*s_+x, qt)+r)}"))
            for k in range(8):
                gn = es.put_va(gn, I(f"v_mul_f32 v{st_+4+k}, v{st_+4+k}, v{RL+qt}"))
            for k in range(4):
                gn = es.put_va(gn, I(f"v_cvt_pk_bf16_f32 v{st_+k}, v{st_+4+2*k}, v{st_+5+2*k}"))
            stn = I(f"buffer_store_dwordx4 {v(st_,4)}, v{VL16}, {s(SRD_O,4)}, s{S_Q+qt} offen offset:{s_*1024}")
            gn2 = es.put_mem(gn + 1, stn, cost=2, exact=False)
    ep.extend(pre)
    for k, m in enumerate(mf):
        ep.e(m)
        for g_, it in es.gap(k): ep.e(it)
    first_tail = True
    ep.e("s_nop 3")
    for it in es.tail: ep.e(it)
    ep.e("s_waitcnt lgkmcnt(0)")
    ep.e(f"v_or3_b32 v{FL}, v{FL}, v{FL+1}, v{FL+2}")
    ep.e(f"v_or_b32 v{FL}, v{FL}, v{FL+3}")
    ep.e("s_nop 0")
    ep.e(f"v_readfirstlane_b32 s52, v{FL}")
    ep.e("s_nop 3")
    ep.e(f"s_andn2_b32 s52, s52, s{S_FB}")
    ep.e("s_cmp_lg_u32 s52, 0")
    ep.e("s_cbranch_scc1 K1_FB")
    ep.e("K1_END:")
    ep.e("s_endpgm")

    fb = Seq()
    fb.e("K1_FB:")
    fb.e(f"s_mov_b32 s{S_FB}, -1")
    fb.e("s_waitcnt vmcnt(0)")
    for r in range(16): fb.e(f"v_mov_b32 v{NM+r}, 0xff800000")
    fb.e(f"s_mov_b32 s{S_K0}, 0")
    fb.e(f"s_mov_b32 s{S_K1}, 4096")
    fb.e("s_mov_b32 s52, 0")
    def lin_kv(z, isk, slot):
        for j in range(8):
            if j % 4 == 0:
                z.e(m0_set(slot * SLOT + (j >> 2) * 4096)); z.e("s_nop 0")
            z.e(k_dma(j) if isk else v_dma(j))
        r0 = S_K0 if isk else S_V0
        z.e(f"s_add_u32 s{r0}, s{r0}, {SLOT}")
        z.e(f"s_add_u32 s{r0+1}, s{r0+1}, {SLOT}")
    fl = Seq()
    fl.e("K1_FBT:")
    fl.e("s_barrier")
    lin_kv(fl, True, 0)
    fl.e("s_waitcnt vmcnt(0)")
    fl.e("s_barrier")
    fl.e("s_mov_b32 s53, 0")
    fi = Seq()
    fi.e("K1_FBI:")
    for t in range(4): fi.e(k_read(0, 0, t))
    for t in range(4): fi.e(f"v_add_u32 v{KA+t}, 4096, v{KA+t}")
    fi.e("s_waitcnt lgkmcnt(0)")
    for qt in range(4):
        for t in range(4): fi.e(qk_mfma(0, qt, t, czero=True))
    fi.e("s_nop 7")
    for r in range(16): fi.e(f"v_max_f32 v{NM+r}, v{NM+r}, v{SR+r}")
    fi.e("s_add_u32 s53, s53, 1")
    fi.e("s_cmp_lt_u32 s53, 8")
    fi.e("s_cbranch_scc1 K1_FBI")
    fo = Seq()
    for t in range(4): fo.e(f"v_subrev_u32 v{KA+t}, {SLOT}, v{KA+t}")
    fo.e("s_add_u32 s52, s52, 1")
    fo.e("s_cmp_lt_u32 s52, 16")
    fo.e("s_cbranch_scc1 K1_FBT")
    fz = Seq()
    for qt in range(4):
        r = NM + 4 * qt
        fz.e(f"v_max3_f32 v{T+qt}, v{r}, v{r+1}, v{r+2}")
        fz.e(f"v_max_f32 v{T+qt}, v{T+qt}, v{r+3}")
    for sw in ("v_permlane16_swap_b32", "v_permlane32_swap_b32"):
        for qt in range(4): fz.e(f"v_mov_b32 v{T+4+qt}, v{T+qt}")
        for qt in range(4): fz.e(f"{sw} v{T+qt}, v{T+4+qt}")
        for qt in range(4): fz.e(f"v_max_f32 v{T+qt}, v{T+qt}, v{T+4+qt}")
    for qt in range(4):
        for r in range(4): fz.e(f"v_sub_f32 v{NM+4*qt+r}, 0, v{T+qt}")
    for r in range(128): fz.e(f"v_accvgpr_write_b32 {a(r)}, 0")
    fz.e(f"s_mov_b32 s{S_K0}, 0")
    fz.e(f"s_mov_b32 s{S_K1}, 4096")
    fz.e(f"s_mov_b32 s{S_V0}, 0")
    fz.e(f"s_mov_b32 s{S_V1}, 4096")
    fz.e("s_barrier")
    lin_kv(fz, True, 0); lin_kv(fz, True, 1); lin_kv(fz, False, 2)
    fz.e("s_waitcnt vmcnt(0)")
    fz.e("s_barrier")
    for t in range(4): fz.e(k_read(0, 0, t))
    fz.e("s_branch K1_QK0")

    L = list
    main = L(q) + L(e0) + L(mx) + L(e1) + L(b0) + L(b1) + L(b0) + L(b1) + L(b0) + L(ep)
    fbt = (L(e0) + L(mx) + L(e1) + L(b0) + L(ep) + L(fb) + L(fl) + L(fi) + L(fi) + L(fo) + L(fl) + L(fi) + L(fo) + L(fz)
           + L(e0) + L(e1) + L(b0) + L(b1))
    resolve_waits([main, fbt])
    errs = validate(main, "k1") + validate(fbt, "k1fb")
    text = "".join(z.text() for z in (q, e0, mx, e1, b0, b1, ep, fb, fl, fi, fo, fz))
    return text, errs, dict(vgpr=256, agpr=256, lds=5 * SLOT, grid=256, block=256, info=info)


if __name__ == "__main__":
    t, e, m = gen_k1()
    print(len(t.splitlines()), m)
    for x in e[:40]: print("  ", x)
```

```python
from asmlib import *

MB = 1 << 20
WS_XNF = 0
WS_R = 2 * MB
WS_KEY = 2 * MB + 16384
WS_YP = 2 * MB + 65536
WS_WOF = 4 * MB
WS_OF = 8 * MB
NFF = 172
LOG2E = 0x3fb8aa3b

K_X, K_K, K_V, K_WQ, K_WO, K_WR, K_WG, K_WU, K_WD, K_OUT, K_DBG, K_WS = 0, 8, 16, 24, 32, 48, 56, 64, 72, 80, 88, 96


def allreduce(q, regs, tmp, op="v_add_f32"):
    n = len(regs)
    def pad(k):
        if n <= k: q.e(f"s_nop {k - n + 1}") if k - n + 1 >= 0 else None
    for mod in ("quad_perm:[1,0,3,2]", "quad_perm:[2,3,0,1]", "row_half_mirror", "row_mirror"):
        if n < 3: q.e(f"s_nop {2 - n}")
        for r in regs:
            q.e(f"{op}_dpp {v(r)}, {v(r)}, {v(r)} {mod} row_mask:0xf bank_mask:0xf")
    for sw in ("v_permlane16_swap_b32", "v_permlane32_swap_b32"):
        for r, t in zip(regs, tmp):
            q.e(f"v_mov_b32 {v(t)}, {v(r)}")
        if n < 3: q.e(f"s_nop {2 - n + 0}")
        for r, t in zip(regs, tmp):
            q.e(f"{sw} {v(r)}, {v(t)}")
        if n < 2: q.e("s_nop 0")
        for r, t in zip(regs, tmp):
            q.e(f"{op} {v(r)}, {v(r)}, {v(t)}")


def rnd_bf16(q, dst, src):
    q.e(f"v_cvt_pk_bf16_f32 {v(dst)}, {v(src)}, {v(src)}")
    q.e(f"v_lshlrev_b32 {v(dst)}, 16, {v(dst)}")


def unpack(q, dst, src, n):
    for i in range(n):
        q.e(f"v_lshlrev_b32 {v(dst + 2 * i)}, 16, {v(src + i)}")
        q.e(f"v_and_b32 {v(dst + 2 * i + 1)}, 0xffff0000, {v(src + i)}")


def gen_k0():
    q = Seq()
    q.e("s_cmp_ge_u32 s2, 256")
    q.e("s_cbranch_scc1 K0_END")
    q.e(f"s_load_dwordx2 s[4:5], s[0:1], {K_WS}")
    q.e("s_cmp_ge_u32 s2, 128")
    q.e("s_cbranch_scc1 K0_WO")
    ln = Seq()
    ln.e(f"s_load_dwordx2 s[6:7], s[0:1], {K_X}")
    ln.e(f"s_load_dwordx2 s[8:9], s[0:1], {K_WR}")
    ln.e("v_lshlrev_b32 v1, 4, v0")
    ln.e("v_and_b32 v2, 63, v0")
    ln.e("v_lshlrev_b32 v3, 4, v2")
    ln.e("s_lshl_b32 s3, s2, 14")
    ln.e("s_waitcnt lgkmcnt(0)")
    srd(ln, 12, 6, 2 * MB)
    srd(ln, 16, 8, 1024)
    srd(ln, 20, 4, 4 * MB)
    lx = ln.e("buffer_load_dwordx4 v[4:7], v1, s[12:15], s3 offen")
    lw = ln.e("buffer_load_dwordx4 v[8:11], v3, s[16:19], 0 offen")
    ln.e("v_lshrrev_b32 v12, 6, v0")
    ln.e("v_lshlrev_b32 v13, 8, v2")
    ln.e("v_lshl_add_u32 v13, v12, 4, v13")
    ln.e("s_lshl_b32 s10, s2, 4")
    ln.e("v_add_u32 v14, s10, v12")
    ln.e(wait(vm=[lx]))
    unpack(ln, 16, 4, 4)
    ln.e("v_add_f32 v24, v16, v17")
    ln.e("v_add_f32 v25, v18, v19")
    ln.e("v_add_f32 v26, v20, v21")
    ln.e("v_add_f32 v27, v22, v23")
    ln.e("v_add_f32 v24, v24, v25")
    ln.e("v_add_f32 v26, v26, v27")
    ln.e("v_add_f32 v24, v24, v26")
    allreduce(ln, [24], [25])
    ln.e("v_mul_f32 v24, 0x3b000000, v24")
    for i in range(8):
        ln.e(f"v_sub_f32 v{28+i}, v{16+i}, v24")
    ln.e("v_mul_f32 v26, v28, v28")
    ln.e("v_mul_f32 v27, v29, v29")
    for i in range(2, 8, 2):
        ln.e(f"v_fmac_f32 v26, v{28+i}, v{28+i}")
        ln.e(f"v_fmac_f32 v27, v{29+i}, v{29+i}")
    ln.e("v_add_f32 v26, v26, v27")
    allreduce(ln, [26], [25])
    ln.e("v_mul_f32 v26, 0x3b000000, v26")
    rnd_bf16(ln, 24, 24)
    rnd_bf16(ln, 26, 26)
    ln.e("v_add_f32 v26, 0x3727c5ac, v26")
    rnd_bf16(ln, 26, 26)
    ln.e("v_sqrt_f32 v26, v26")
    ln.e("s_nop 0")
    rnd_bf16(ln, 26, 26)
    ln.e("v_rcp_f32 v26, v26")
    for i in range(8):
        ln.e(f"v_sub_f32 v{28+i}, v{16+i}, v24")
    for i in range(4):
        ln.e(f"v_cvt_pk_bf16_f32 v{4+i}, v{28+2*i}, v{29+2*i}")
    unpack(ln, 16, 4, 4)
    for i in range(8):
        ln.e(f"v_mul_f32 v{16+i}, v{16+i}, v26")
    for i in range(4):
        ln.e(f"v_cvt_pk_bf16_f32 v{4+i}, v{16+2*i}, v{17+2*i}")
    ln.e("buffer_store_dwordx4 v[4:7], v13, s[20:23], s3 offen")
    unpack(ln, 16, 4, 4)
    ln.e(wait(vm=[lw]))
    unpack(ln, 28, 8, 4)
    ln.e("v_mul_f32 v24, v16, v28")
    ln.e("v_mul_f32 v25, v17, v29")
    for i in range(2, 8, 2):
        ln.e(f"v_fmac_f32 v24, v{16+i}, v{28+i}")
        ln.e(f"v_fmac_f32 v25, v{17+i}, v{29+i}")
    ln.e("v_add_f32 v24, v24, v25")
    allreduce(ln, [24], [25])
    rnd_bf16(ln, 24, 24)
    ln.e("v_ashrrev_i32 v25, 31, v24")
    ln.e("v_or_b32 v25, 0x80000000, v25")
    ln.e("v_xor_b32 v24, v24, v25")
    ln.e("v_and_b32 v24, 0xffff0000, v24")
    ln.e("v_sub_u32 v25, 0xffff, v14")
    ln.e("v_or_b32 v24, v24, v25")
    ln.e("v_lshlrev_b32 v14, 2, v14")
    ln.e(f"s_mov_b32 s11, {WS_R}")
    ln.e("v_cmp_eq_u32 vcc, 0, v2")
    ln.e("s_nop 4")
    ln.e("s_and_saveexec_b64 s[24:25], vcc")
    ln.e("buffer_store_dword v24, v14, s[20:23], s11 offen")
    ln.e("s_endpgm")
    wo = Seq()
    wo.e("K0_WO:")
    wo.e(f"s_load_dwordx2 s[6:7], s[0:1], {K_WO}")
    wo.e("s_sub_u32 s3, s2, 128")
    wo.e("v_lshlrev_b32 v1, 4, v0")
    wo.e("s_lshl_b32 s10, s3, 15")
    wo.e("s_add_u32 s11, s10, 16384")
    wo.e("s_waitcnt lgkmcnt(0)")
    srd(wo, 12, 6, 4 * MB)
    srd(wo, 20, 4, 4 * MB, off=WS_WOF)
    l0 = wo.e("buffer_load_dwordx4 v[4:7], v1, s[12:15], s10 offen")
    l1 = wo.e("buffer_load_dwordx4 v[8:11], v1, s[12:15], s11 offen")
    wo.e("v_lshrrev_b32 v12, 6, v0")
    wo.e("v_and_b32 v2, 63, v0")
    wo.e("v_mul_u32_u24 v13, 1040, v12")
    wo.e("v_lshl_add_u32 v13, v2, 4, v13")
    wo.e("v_lshrrev_b32 v14, 2, v2")
    wo.e("v_mul_u32_u24 v14, 1040, v14")
    wo.e("v_and_b32 v15, 3, v2")
    wo.e("v_lshl_add_u32 v14, v15, 5, v14")
    wo.e("v_lshrrev_b32 v15, 1, v12")
    wo.e("v_lshl_add_u32 v14, v15, 7, v14")
    wo.e("v_and_b32 v16, 1, v12")
    wo.e("v_lshl_add_u32 v14, v16, 4, v14")
    wo.e("v_lshlrev_b32 v17, 19, v15")
    wo.e("v_lshl_add_u32 v17, v16, 11, v17")
    wo.e("v_lshl_add_u32 v17, v2, 4, v17")
    wo.e("s_lshl_b32 s10, s3, 12")
    wo.e(wait(vm=[l0]))
    wo.e("ds_write_b128 v13, v[4:7]")
    wo.e(wait(vm=[l1]))
    wo.e(f"ds_write_b128 v13, v[8:11] offset:{16*1040}")
    wo.e("s_waitcnt lgkmcnt(0)")
    wo.e("s_barrier")
    wo.e("ds_read_b64_tr_b16 v[20:21], v14")
    wo.e(f"ds_read_b64_tr_b16 v[22:23], v14 offset:{16*1040}")
    wo.e("ds_read_b64_tr_b16 v[24:25], v14 offset:8")
    wo.e(f"ds_read_b64_tr_b16 v[26:27], v14 offset:{16*1040+8}")
    wo.e("s_waitcnt lgkmcnt(2)")
    wo.e("buffer_store_dwordx4 v[20:23], v17, s[20:23], s10 offen")
    wo.e("s_waitcnt lgkmcnt(0)")
    wo.e("buffer_store_dwordx4 v[24:27], v17, s[20:23], s10 offen offset:1024")
    wo.e("K0_END:")
    wo.e("s_endpgm")
    tr1 = list(q) + list(ln); tr2 = list(q) + list(wo)
    resolve_waits([tr1, tr2])
    errs = validate(tr1, "k0ln") + validate(tr2, "k0wo")
    return q.text() + ln.text() + wo.text(), errs, dict(vgpr=40, lds=32 * 1040, grid=256, block=1024)


def silu_bf16(q, dst, src, tmp, n):
    for i in range(n):
        q.e(f"v_mul_f32 {v(tmp+i)}, s40, {v(src+i)}")
    for i in range(n):
        q.e(f"v_exp_f32 {v(tmp+i)}, {v(tmp+i)}")
    if n == 1: q.e("s_nop 0")
    for i in range(n):
        q.e(f"v_add_f32 {v(tmp+i)}, 1.0, {v(tmp+i)}")
    for i in range(n):
        q.e(f"v_rcp_f32 {v(tmp+i)}, {v(tmp+i)}")
    if n == 1: q.e("s_nop 0")
    for i in range(n):
        q.e(f"v_mul_f32 {v(tmp+i)}, {v(tmp+i)}, {v(src+i)}")
    for i in range(n):
        rnd_bf16(q, dst + i, tmp + i)


def gen_kf():
    q = Seq()
    q.e(f"s_cmp_ge_u32 s2, {NFF}")
    q.e("s_cbranch_scc1 KF_END")
    q.e(f"s_load_dwordx2 s[4:5], s[0:1], {K_WS}")
    q.e(f"s_load_dwordx2 s[6:7], s[0:1], {K_WG}")
    q.e(f"s_load_dwordx2 s[8:9], s[0:1], {K_WU}")
    q.e(f"s_load_dwordx2 s[10:11], s[0:1], {K_WD}")
    q.e("v_lshlrev_b32 v1, 4, v0")
    q.e("v_mul_u32_u24 v2, 2752, v0")
    q.e("s_lshl_b32 s3, s2, 4")
    q.e("s_lshl_b32 s30, s2, 13")
    q.e(f"s_mov_b32 s31, {WS_R}")
    q.e(f"s_mov_b32 s32, {WS_R + 4096}")
    q.e(f"s_mov_b32 s40, {LOG2E | 0x80000000}")
    q.e("s_waitcnt lgkmcnt(0)")
    srd(q, 12, 4, 4 * MB)
    srd(q, 16, 6, 512 * 2752)
    srd(q, 20, 8, 512 * 2752)
    srd(q, 24, 10, 1376 * 1024)
    lr = []
    for i in range(8):
        lr.append(q.e(f"buffer_load_dwordx4 {v(8+4*i,4)}, v1, s[12:15], s{31 + i//4} offen offset:{(i%4)*1024}"))
    lg = []
    for i in range(8):
        lg.append(q.e(f"buffer_load_dwordx4 {v(40+4*i,4)}, v2, s[16:19], s3 offen"))
        lg.append(q.e(f"buffer_load_dwordx4 {v(72+4*i,4)}, v2, s[20:23], s3 offen"))
        if i < 7: q.e(f"s_add_u32 s3, s3, {64*2752}")
    ld = []
    for i in range(8):
        if i == 4: q.e("s_add_u32 s30, s30, 4096")
        ld.append(q.e(f"buffer_load_dwordx4 {v(104+4*i,4)}, v1, s[24:27], s30 offen offset:{(i%4)*1024}"))
    q.e(wait(vm=lr))
    for i in range(8, 40, 4):
        q.e(f"v_max3_u32 v{i}, v{i}, v{i+1}, v{i+2}")
    q.e("v_max3_u32 v8, v8, v11, v12")
    q.e("v_max3_u32 v16, v16, v15, v19")
    q.e("v_max3_u32 v20, v20, v23, v24")
    q.e("v_max3_u32 v28, v28, v27, v31")
    q.e("v_max3_u32 v32, v32, v35, v36")
    q.e("v_max3_u32 v8, v8, v39, v16")
    q.e("v_max3_u32 v20, v20, v28, v32")
    q.e("v_max_u32 v8, v8, v20")
    allreduce(q, [8], [9], op="v_max_u32")
    q.e("s_nop 0")
    q.e("v_readfirstlane_b32 s33, v8")
    q.e("s_nop 3")
    q.e("s_and_b32 s34, s33, 0xffff")
    q.e("s_sub_u32 s34, 0xffff, s34")
    q.e("s_lshr_b32 s35, s34, 4")
    q.e("s_lshl_b32 s35, s35, 14")
    q.e("s_and_b32 s36, s34, 15")
    q.e("s_lshl_b32 s36, s36, 4")
    q.e("s_add_u32 s35, s35, s36")
    q.e("v_lshrrev_b32 v3, 3, v0")
    q.e("v_lshlrev_b32 v3, 8, v3")
    q.e("v_and_b32 v4, 7, v0")
    q.e("v_lshl_add_u32 v3, v4, 1, v3")
    lx = []
    for i in range(8):
        if i: q.e("s_add_u32 s35, s35, 2048")
        lx.append(q.e(f"buffer_load_ushort v{10+i}, v3, s[12:15], s35 offen"))
    q.e("s_cmp_lg_u32 s2, 0")
    q.e("s_cbranch_scc1 KF_NOKEY")
    q.e(f"v_mov_b32 v5, {WS_KEY}")
    stk = q.e("buffer_store_dword v8, v5, s[12:15], 0 offen")
    q.e("KF_NOKEY:")
    q.e("s_waitcnt vmcnt(0)")
    for i in range(8):
        q.e(f"v_lshlrev_b32 v{10+i}, 16, v{10+i}")
    for i in range(8):
        for (src, acc) in ((40 + 4 * i, 140), (72 + 4 * i, 148)):
            unpack(q, 20, src, 4)
            for e in range(8):
                if i == 0: q.e(f"v_mul_f32 v{acc+e}, v{20+e}, v10")
                else: q.e(f"v_fmac_f32 v{acc+e}, v{20+e}, v{10+i}")
    allreduce(q, list(range(140, 156)), list(range(20, 36)))
    for e in range(16):
        rnd_bf16(q, 140 + e, 140 + e)
    silu_bf16(q, 140, 140, 20, 8)
    for e in range(8):
        q.e(f"v_mul_f32 v{140+e}, v{140+e}, v{148+e}")
    for e in range(8):
        rnd_bf16(q, 140 + e, 140 + e)
    for j in range(8):
        unpack(q, 20, 104 + 4 * j, 4)
        for e in range(8):
            if j == 0: q.e(f"v_mul_f32 v{32+e}, v{20+e}, v140")
            else: q.e(f"v_fmac_f32 v{32+e}, v{20+e}, v{140+j}")
    q.e("v_lshlrev_b32 v1, 5, v0")
    q.e("s_lshl_b32 s30, s2, 11")
    q.e(f"s_add_u32 s30, s30, {WS_YP}")
    q.e("buffer_store_dwordx4 v[32:35], v1, s[12:15], s30 offen")
    q.e("buffer_store_dwordx4 v[36:39], v1, s[12:15], s30 offen offset:16")
    q.e("KF_END:")
    q.e("s_endpgm")
    resolve_waits([q])
    errs = validate(q, "kf")
    return q.text(), errs, dict(vgpr=160, lds=0, grid=NFF, block=64)


def gen_k2(depth=5):
    ACC = 32
    RING = 96
    NV = RING + 32 * depth
    assert NV <= 256
    TMP = ACC
    LDS_Y = 65536
    q = Seq()
    q.e("s_cmp_ge_u32 s2, 256")
    q.e("s_cbranch_scc1 K2_END")
    q.e(f"s_load_dwordx2 s[4:5], s[0:1], {K_WS}")
    q.e(f"s_load_dwordx2 s[6:7], s[0:1], {K_X}")
    q.e(f"s_load_dwordx2 s[8:9], s[0:1], {K_OUT}")
    q.e("v_lshrrev_b32 v1, 6, v0")
    q.e("v_and_b32 v2, 63, v0")
    q.e("v_readfirstlane_b32 s3, v1")
    q.e("s_and_b32 s30, s2, 7")
    q.e("s_lshl_b32 s30, s30, 2")
    q.e("s_bfe_u32 s31, s2, 0x20003")
    q.e("s_add_u32 s30, s30, s31")
    q.e("s_lshr_b32 s31, s2, 5")
    q.e(f"s_mov_b32 s40, {LOG2E | 0x80000000}")
    q.e("s_waitcnt lgkmcnt(0)")
    q.e(f"s_mov_b32 s34, {WS_KEY}")
    q.e("s_load_dword s33, s[4:5], s34")
    srd(q, 12, 4, 4 * MB)
    q.e("s_cmp_eq_u32 s3, 4")
    q.e("s_cbranch_scc1 K2_Y")
    g = Seq()
    g.e("s_lshl_b32 s34, s30, 19")
    g.e(f"s_add_u32 s34, s34, {WS_OF}")
    srd(g, 16, 4, 524288, off="s34")
    g.e("s_lshl_b32 s34, s31, 19")
    g.e(f"s_add_u32 s34, s34, {WS_WOF}")
    srd(g, 20, 4, 524288, off="s34")
    srd(g, 24, 6, 2 * MB)
    srd(g, 44, 8, 2 * MB)
    g.e("v_lshlrev_b32 v3, 4, v2")
    g.e("s_lshl_b32 s34, s3, 15")
    g.e("v_add_u32 v4, s34, v3")
    for t in range(1, 4):
        g.e(f"v_add_u32 v{4+t}, {t*131072}, v4")
    g.e("s_lshl_b32 s34, s3, 17")
    g.e("v_add_u32 v8, s34, v3")
    loads = {}
    def issue(i):
        st = RING + 32 * (i % depth)
        g.e(f"s_mov_b32 s36, {i*4096}")
        if i % 4 == 0: g.e(f"s_mov_b32 s37, {i*1024}")
        ls = []
        for t in range(4):
            ls.append(g.e(f"buffer_load_dwordx4 {v(st+4*t,4)}, v8, s[20:23], s36 offen offset:{t*1024}"))
            ls.append(g.e(f"buffer_load_dwordx4 {v(st+16+4*t,4)}, v{4+t}, s[16:19], s37 offen offset:{(i%4)*1024}"))
        loads[i] = ls
    issue(0)
    g.e("v_and_b32 v9, 15, v2")
    g.e("v_lshrrev_b32 v10, 4, v2")
    g.e("s_lshl_b32 s34, s30, 2")
    g.e("s_add_u32 s34, s34, s3")
    g.e("v_lshlrev_b32 v11, 10, v9")
    g.e("v_lshl_add_u32 v11, v10, 5, v11")
    g.e("s_lshl_b32 s35, s34, 14")
    g.e("s_lshl_b32 s38, s31, 7")
    g.e("s_add_u32 s38, s38, s35")
    g.e("v_lshlrev_b32 v12, 9, v10")
    g.e("v_lshl_add_u32 v12, v9, 4, v12")
    g.e("s_lshl_b32 s39, s31, 11")
    g.e("s_add_u32 s39, s39, s35")
    XN = ACC + 32
    def load_xn(z):
        return [z.e(f"buffer_load_dwordx4 {v(XN,4)}, v12, s[12:15], s39 offen"),
                z.e(f"buffer_load_dwordx4 {v(XN+4,4)}, v12, s[12:15], s39 offen offset:256")]
    def gate_pack(z):
        silu_bf16(z, TMP, TMP, TMP + 16, 16)
        for e in range(8):
            z.e(f"v_perm_b32 v{24+e}, {v(TMP+2*e+1)}, {v(TMP+2*e)}, s41")
    g.e("s_mov_b32 s41, 0x07060302")
    ln = load_xn(g)
    lx = [g.e("buffer_load_dwordx4 v[16:19], v11, s[24:27], s38 offen"),
          g.e("buffer_load_dwordx4 v[20:23], v11, s[24:27], s38 offen offset:16")]
    for i in range(1, depth):
        issue(i)
    g.e(wait(vm=ln, lgn=0))
    unpack(g, TMP, XN, 8)
    gate_pack(g)
    for i in range(32):
        st = RING + 32 * (i % depth)
        g.e(wait(vm=loads[i]))
        for nt in range(4):
            for qt in range(4):
                ac = v(ACC + 16 * qt + 4 * nt, 4)
                g.e(f"v_mfma_f32_16x16x32_bf16 {ac}, {v(st+4*nt,4)}, {v(st+16+4*qt,4)}, {ac if i else 0}")
        if i + depth < 32:
            issue(i + depth)
    g.e("s_lshl_b32 s34, s3, 12")
    g.e("v_add_u32 v13, s34, v3")
    g.e("s_lshl_b32 s34, s3, 14")
    g.e("v_add_u32 v14, s34, v3")
    g.e("s_nop 4")
    for qt in range(4):
        for nt in range(4):
            g.e(f"ds_write_b128 v13, {v(ACC+16*qt+4*nt,4)} offset:{qt*16384+nt*1024}")
        if qt == 2: g.e("s_waitcnt lgkmcnt(4)")
    g.e("s_waitcnt lgkmcnt(0)")
    g.e("s_barrier")
    for sw in range(4):
        for nt in range(4):
            g.e(f"ds_read_b128 {v(RING+16*sw+4*nt,4)}, v14 offset:{sw*4096+nt*1024}")
        if sw == 2: g.e("s_waitcnt lgkmcnt(4)")
    g.e("s_and_b32 s35, s33, 0xffff")
    g.e("s_sub_u32 s35, 0xffff, s35")
    g.e("s_lshr_b32 s36, s35, 4")
    g.e("s_lshl_b32 s34, s30, 2")
    g.e("s_add_u32 s34, s34, s3")
    g.e("s_cmp_lg_u32 s36, s34")
    g.e("s_cbranch_scc1 K2_NOPATCH")
    p = Seq()
    load_xn(p)
    p.e("v_lshlrev_b32 v15, 6, v10")
    p.e(f"v_add_u32 v15, {LDS_Y}, v15")
    for k in range(4):
        p.e(f"ds_read_b128 {v(TMP+16+4*k,4)}, v15 offset:{16*k}")
    p.e("s_and_b32 s35, s35, 15")
    p.e("v_cmp_eq_u32 vcc, s35, v9")
    p.e("s_waitcnt vmcnt(0) lgkmcnt(0)")
    unpack(p, TMP, XN, 8)
    for e in range(16):
        p.e(f"v_cndmask_b32 {v(TMP+16+e)}, 0, {v(TMP+16+e)}, vcc")
    for e in range(16):
        p.e(f"v_add_f32 {v(TMP+e)}, {v(TMP+e)}, {v(TMP+16+e)}")
    for e in range(16):
        rnd_bf16(p, TMP + e, TMP + e)
    gate_pack(p)
    h = Seq()
    h.e("K2_NOPATCH:")
    unpack(h, TMP, 24, 8)
    unpack(h, TMP + 16, 16, 8)
    h.e("s_waitcnt lgkmcnt(0)")
    for e in range(16):
        h.e(f"v_add_f32 {v(RING+e)}, {v(RING+e)}, {v(RING+16+e)}")
        h.e(f"v_add_f32 {v(RING+32+e)}, {v(RING+32+e)}, {v(RING+48+e)}")
    for e in range(16):
        h.e(f"v_add_f32 {v(RING+e)}, {v(RING+e)}, {v(RING+32+e)}")
    for e in range(16):
        rnd_bf16(h, RING + e, RING + e)
    for e in range(16):
        h.e(f"v_mul_f32 {v(RING+e)}, {v(RING+e)}, {v(TMP+e)}")
    for e in range(16):
        rnd_bf16(h, RING + e, RING + e)
    for e in range(16):
        h.e(f"v_add_f32 {v(RING+e)}, {v(RING+e)}, {v(TMP+16+e)}")
    for e in range(8):
        h.e(f"v_cvt_pk_bf16_f32 {v(16+e)}, {v(RING+2*e)}, {v(RING+2*e+1)}")
    h.e("buffer_store_dwordx4 v[16:19], v11, s[44:47], s38 offen")
    h.e("buffer_store_dwordx4 v[20:23], v11, s[44:47], s38 offen offset:16")
    h.e("s_endpgm")
    y = Seq()
    y.e("K2_Y:")
    y.e("s_waitcnt lgkmcnt(0)")
    y.e("s_and_b32 s35, s33, 0xffff")
    y.e("s_sub_u32 s35, 0xffff, s35")
    y.e("s_lshr_b32 s36, s35, 6")
    y.e("s_cmp_lg_u32 s36, s30")
    y.e("s_cbranch_scc1 K2_END")
    y.e("v_lshrrev_b32 v3, 4, v2")
    y.e("v_and_b32 v4, 15, v2")
    y.e("v_lshlrev_b32 v5, 11, v3")
    y.e("v_lshl_add_u32 v5, v4, 4, v5")
    y.e("s_lshl_b32 s34, s31, 8")
    y.e(f"s_add_u32 s34, s34, {WS_YP}")
    ly = []
    for i in range(43):
        ly.append(y.e(f"buffer_load_dwordx4 {v(16+4*i,4)}, v5, s[12:15], s34 offen"))
        if i < 42: y.e("s_add_u32 s34, s34, 8192")
    y.e("s_and_b32 s36, s33, 0xffff0000")
    y.e("s_xor_b32 s37, s36, 0x80000000")
    y.e("s_xor_b32 s38, s36, 0xffff0000")
    y.e("s_bitcmp1_b32 s36, 31")
    y.e("s_cselect_b32 s36, s37, s38")
    y.e("v_mov_b32 v6, s36")
    y.e("v_mul_f32 v6, s40, v6")
    y.e("v_exp_f32 v6, v6")
    y.e("s_nop 0")
    y.e("v_add_f32 v6, 1.0, v6")
    y.e("v_rcp_f32 v6, v6")
    y.e("s_nop 0")
    rnd_bf16(y, 6, 6)
    for i in range(1, 43):
        if i in (1, 8, 16, 24, 32, 40): y.e(wait(vm=[ly[min(42, (i // 8) * 8 + 7)]]))
        for e in range(4):
            y.e(f"v_add_f32 v{16+e}, v{16+e}, v{16+4*i+e}")
    for sw in ("v_permlane16_swap_b32", "v_permlane32_swap_b32"):
        for e in range(4): y.e(f"v_mov_b32 v{20+e}, v{16+e}")
        for e in range(4): y.e(f"{sw} v{16+e}, v{20+e}")
        for e in range(4): y.e(f"v_add_f32 v{16+e}, v{16+e}, v{20+e}")
    for e in range(4): rnd_bf16(y, 16 + e, 16 + e)
    for e in range(4): y.e(f"v_mul_f32 v{16+e}, v{16+e}, v6")
    for e in range(4): rnd_bf16(y, 16 + e, 16 + e)
    y.e("v_lshlrev_b32 v4, 4, v4")
    y.e(f"v_add_u32 v4, {LDS_Y}, v4")
    y.e("ds_write_b128 v4, v[16:19]")
    y.e("s_waitcnt lgkmcnt(0)")
    y.e("s_barrier")
    y.e("K2_END:")
    y.e("s_endpgm")
    t1 = list(q) + list(g) + list(p) + list(h)
    t2 = list(q) + list(g) + list(h)
    t3 = list(q) + list(y)
    resolve_waits([t1, t2, t3])
    errs = validate(t1, "k2a") + validate(t2, "k2b") + validate(t3, "k2y")
    return q.text() + g.text() + p.text() + h.text() + y.text(), errs, dict(vgpr=NV, lds=65536 + 256, grid=256, block=320)
```

```python
import sys
sys.path.insert(0, "dev")
from asmlib import *
import gen_small, gen_k1
NAME = "recurrent_scan__mha_block_cached__moe_arch_mod__prompt"

def build(out, k1args={}, k2args={}, order=("k0", "kf", "k1", "k2")):
    ref = open(f"cdna_kernels/{NAME}.s.ref").read().split("\n")
    head = [l for l in ref if l.startswith(";") and "@launch" not in l]
    ks = dict(k0=("ln_kernel", gen_small.gen_k0()), kf=("ffn_kernel", gen_small.gen_kf()),
              k1=(NAME + "_kernel", gen_k1.gen_k1(**k1args)), k2=("oproj_kernel", gen_small.gen_k2(**k2args)))
    bad = False
    texts = []; descs = []
    for k in order:
        nm, (t, e, m) = ks[k]
        head.append(f"; @launch kernel={nm} grid=({m['grid']},1,1) block=({m['block']},1,1) lds={m['lds']}")
    for k in dict.fromkeys(order):
        nm, (t, e, m) = ks[k]
        for x in e: print("VALIDATE:", x); bad = True
        tt, dd = kernel_text(nm, t, m["vgpr"], m.get("agpr", 0))
        texts.append(tt); descs.append(dd)
    assert not bad
    s = "\n".join(head) + '\n.amdgcn_target "amdgcn-amd-amdhsa--gfx950"\n' + "".join(texts) + "".join(descs)
    open(out, "w").write(s)

if __name__ == "__main__":
    build(f"cdna_kernels/{NAME}.s")
```

```python
import re

def rng(p, i, n=1):
    return f"{p}{i}" if n == 1 else f"{p}[{i}:{i+n-1}]"
def v(i, n=1): return rng("v", i, n)
def a(i, n=1): return rng("a", i, n)
def s(i, n=1): return rng("s", i, n)

TRANS = ("v_exp_f32", "v_log_f32", "v_rcp_f32", "v_rsq_f32", "v_sqrt_f32", "v_sin_f32", "v_cos_f32")
RMW = ("v_fmac_f32", "v_writelane_b32", "v_fmac_f32_dpp")

_reg = re.compile(r"^(-?)(abs\()?\|?([vas])(\d+|\[(\d+):(\d+)\])\|?\)?$")

def regs_of(tok):
    tok = tok.strip()
    if tok in ("vcc", "exec", "m0", "scc"):
        return [tok]
    if tok in ("vcc_lo", "vcc_hi"): return ["vcc"]
    if tok in ("exec_lo", "exec_hi"): return ["exec"]
    m = _reg.match(tok)
    if not m:
        return []
    p = m.group(3)
    if m.group(5) is not None:
        return [(p, k) for k in range(int(m.group(5)), int(m.group(6)) + 1)]
    return [(p, int(m.group(4)))]


class I:
    __slots__ = ("text", "op", "defs", "uses", "kind", "dpp", "need_vm", "need_lg", "vm", "lg",
                 "srcc", "srcab", "tag", "nops", "wide_store")
    def __init__(self, text, tag=None):
        self.text = text
        self.tag = tag
        self.need_vm = None; self.need_lg = None; self.vm = None; self.lg = None
        self.srcc = []; self.srcab = []; self.dpp = False; self.nops = 1; self.wide_store = False
        self.defs = []; self.uses = []
        t = text.split(";")[0].strip()
        if t.endswith(":"):
            self.op = "label"; self.kind = "label"; self.nops = 0; return
        if t.startswith("."):
            self.op = "dir"; self.kind = "label"; self.nops = 0; return
        parts = t.split(None, 1)
        op = parts[0]; self.op = op
        rest = parts[1] if len(parts) > 1 else ""
        ops = [x.strip() for x in rest.split(",")] if rest else []
        mods = ""
        if ops:
            last = ops[-1].split(None, 1)
            if "quad_perm" in rest or "op_sel" in rest:
                kw = "quad_perm" if "quad_perm" in rest else "op_sel"
                head, _, tail = rest.partition(kw)
                ops = [x.strip() for x in head.split(",")]
                mods = kw + tail
            else:
                ops[-1] = last[0]
                mods = last[1] if len(last) > 1 else ""
        base = op.replace("_e32", "").replace("_e64", "").replace("_dpp", "")
        R = lambda k: regs_of(ops[k]) if k < len(ops) else []
        allr = lambda k0: [r for x in ops[k0:] for r in regs_of(x)]
        if op.startswith("v_mfma"):
            self.kind = "mfma"
            self.defs = R(0); self.srcab = R(1) + R(2); self.srcc = R(3)
            self.uses = self.srcab + self.srcc
        elif op.startswith("v_cmp"):
            self.kind = "valu"; self.defs = R(0); self.uses = allr(1)
            if op.startswith("v_cmpx"): self.defs = self.defs + ["exec"]
        elif op.startswith("v_permlane") and "swap" in op:
            self.kind = "valu"; self.defs = R(0) + R(1); self.uses = R(0) + R(1)
        elif op in ("v_add_co_u32", "v_sub_co_u32", "v_addc_co_u32"):
            self.kind = "valu"; self.defs = R(0) + R(1); self.uses = allr(2)
        elif op == "v_nop":
            self.kind = "valu"
        elif op.startswith("v_"):
            self.kind = "trans" if base in TRANS else "valu"
            self.defs = R(0); self.uses = allr(1)
            if base in RMW or base == "v_cvt_pk_bf16_f32_hi": self.uses = self.uses + R(0)
            if any(k in mods for k in ("quad_perm", "row_", "wave_", "bank_mask")):
                self.dpp = True
                self.uses = self.uses + R(0)
            if op.startswith("v_div_fmas"): self.uses = self.uses + ["vcc"]
        elif op.startswith("ds_read") or op.startswith("ds_bpermute") or op.startswith("ds_swizzle"):
            self.kind = "ds_r"; self.defs = R(0); self.uses = allr(1)
        elif op.startswith("ds_write") or op.startswith("ds_or") or op.startswith("ds_add") or op.startswith("ds_max"):
            self.kind = "ds_w"; self.uses = allr(0)
        elif op.startswith("buffer_load") or op.startswith("global_load"):
            if " lds" in (" " + mods) or mods.endswith("lds"):
                self.kind = "dma"; self.uses = allr(0) + ["m0"]
            else:
                self.kind = "vm_ld"; self.defs = R(0); self.uses = allr(1)
                if "d16" in op: self.uses = self.uses + R(0)
        elif op.startswith("buffer_store") or op.startswith("global_store"):
            self.kind = "vm_st"; self.uses = allr(0)
            self.wide_store = ("x4" in op or "x3" in op)
        elif op.startswith("buffer_atomic") or op.startswith("global_atomic"):
            self.kind = "vm_st"; self.uses = allr(0)
            if "sc0" in mods:
                self.kind = "vm_ld"; self.defs = R(0)
        elif op.startswith("buffer_wbl2") or op.startswith("buffer_inv"):
            self.kind = "vm_st"
        elif op.startswith("s_load") or op in ("s_memtime", "s_memrealtime"):
            self.kind = "smem"; self.defs = R(0); self.uses = allr(1)
        elif op == "s_waitcnt":
            self.kind = "wait"
            m = re.search(r"vmcnt\((\d+)\)", rest); self.vm = int(m.group(1)) if m else None
            m = re.search(r"lgkmcnt\((\d+)\)", rest); self.lg = int(m.group(1)) if m else None
        elif op == "s_nop":
            self.kind = "nop"; self.nops = int(ops[0], 0) + 1
        elif op == "s_barrier":
            self.kind = "barrier"
        elif op.startswith("s_cbranch") or op in ("s_branch", "s_endpgm", "s_setprio", "s_sleep"):
            self.kind = "branch"
            if "vcc" in op: self.uses = ["vcc"]
            if "exec" in op: self.uses = ["exec"]
            if "scc" in op: self.uses = ["scc"]
        elif op.startswith("s_cmp"):
            self.kind = "salu"; self.defs = ["scc"]; self.uses = allr(0)
        elif op.startswith("s_"):
            self.kind = "salu"; self.defs = R(0); self.uses = allr(1)
            if "saveexec" in op: self.defs = self.defs + ["exec"]
            if op.startswith("s_bitcmp"):
                self.defs = ["scc"]; self.uses = allr(0)
            elif not (op.startswith("s_mov") or op.startswith("s_cselect") or op.startswith("s_mul") or op.startswith("s_getreg") or op.startswith("s_setreg")):
                self.defs = self.defs + ["scc"]
            if op.startswith("s_cselect") or op.startswith("s_addc") or op.startswith("s_subb"):
                self.uses = self.uses + ["scc"]
        else:
            raise ValueError("unknown op " + text)

    def __repr__(self): return self.text


def wait(vm=None, lg=None, vmn=None, lgn=None):
    w = I("s_waitcnt vmcnt(63) lgkmcnt(15)")
    w.need_vm = vm; w.need_lg = lg
    w.vm = vmn; w.lg = lgn
    fix_wait_text(w)
    return w

def fix_wait_text(w):
    parts = []
    if w.vm is not None: parts.append(f"vmcnt({w.vm})")
    if w.lg is not None: parts.append(f"lgkmcnt({w.lg})")
    w.text = "s_waitcnt " + " ".join(parts) if parts else "s_nop 0"

VMK = ("vm_ld", "vm_st", "dma")
LGK = ("ds_r", "ds_w", "smem")

def resolve_waits(traces):
    res = {}
    for tr in traces:
        vmseq = []; lgseq = []
        for ins in tr:
            if ins.kind in VMK: vmseq.append(ins)
            elif ins.kind in LGK: lgseq.append(ins)
            elif ins.kind == "wait":
                for need, seq, key, mx in ((ins.need_vm, vmseq, "vm", 63), (ins.need_lg, lgseq, "lg", 15)):
                    if need is None: continue
                    best = None
                    for nd in need:
                        idx = None
                        for k in range(len(seq) - 1, -1, -1):
                            if seq[k] is nd: idx = k; break
                        if idx is None: continue
                        n = len(seq) - 1 - idx
                        best = n if best is None else min(best, n)
                    if best is None: continue
                    best = min(best, mx)
                    cur = res.get((id(ins), key))
                    res[(id(ins), key)] = (ins, best if cur is None else min(cur[1], best))
    for (i_, key), (ins, n) in res.items():
        setattr(ins, key, n)
    for tr in traces:
        for ins in tr:
            if ins.kind == "wait" and (ins.need_vm is not None or ins.need_lg is not None):
                fix_wait_text(ins)


def validate(tr, name="", deficits=None):
    errs = []
    def dfc(ins, n):
        if deficits is not None: deficits.append((ins, n))
    vmq = []; lgq = []
    pos = 0
    last_w = {}
    last_srcc = {}
    last_wst = {}
    maxvm = 0; maxlg = 0
    def err(msg, ins):
        errs.append(f"{name}: {msg}: {ins.text}")
    for ins in tr:
        if ins.kind == "label": continue
        k = ins.kind
        touched = set(ins.defs) | set(ins.uses)
        for q in (vmq, lgq):
            for o in q:
                if o.defs and (set(o.defs) & touched):
                    if k in VMK + LGK and not (set(o.defs) & set(ins.uses)) and q is (vmq if k in VMK else lgq):
                        continue
                    err(f"touches reg of outstanding load [{o.text}]", ins)
        isv = k in ("valu", "trans")
        if ins.op.startswith("s_cbranch_scc") or ins.op.startswith("s_cselect"):
            w = last_w.get("scc")
            if not w or not (w[1].op.startswith("s_cmp") or w[1].op.startswith("s_bitcmp")):
                err(f"scc producer is not a compare [{w[1].text if w else None}]", ins)
        if ins.op.startswith("s_addc"):
            w = last_w.get("scc")
            if not w or not w[1].op.startswith("s_add_u32"):
                err("carry producer is not s_add_u32", ins)
        def dist(r):
            return pos - r[0] - 1 + 0
        for r in ins.uses:
            w = last_w.get(r)
            if not w: continue
            d = pos - w[0]
            p = w[1]
            pv = p.kind in ("valu", "trans")
            need = 0
            if p.kind == "mfma":
                if k == "mfma":
                    if r in ins.srcab: need = 8
                    elif r in ins.srcc:
                        need = 0 if (ins.srcc == p.defs) else 6
                elif isv or k in VMK + LGK: need = 8
            elif pv:
                if k == "mfma": need = 2
                if p.kind == "trans" and k == "valu": need = max(need, 1)
                if p.kind == "trans" and k in VMK + LGK: need = max(need, 1)
                if isv and ins.dpp and isinstance(r, tuple) and r[0] == "v": need = max(need, 2)
                if ins.op.startswith("v_permlane"): need = max(need, 2)
                if ins.op in ("v_readlane_b32", "v_readfirstlane_b32") and isinstance(r, tuple) and r[0] == "v":
                    need = max(need, 1)
                if (r == "vcc" or (isinstance(r, tuple) and r[0] == "s")):
                    if isv: need = max(need, 2)
                    if ins.op in ("v_readlane_b32", "v_writelane_b32"): need = max(need, 4)
                    if ins.op.startswith("v_div_fmas"): need = max(need, 4)
                    if k in VMK: need = max(need, 5)
                    if k in ("salu", "branch", "smem"): need = max(need, 4)
                if r == "exec":
                    need = max(need, 5)
            elif p.kind == "salu":
                if r == "m0" and k == "dma": need = 1
            if d < need:
                err(f"RAW hazard on {r} (have {d}, need {need}) after [{p.text}]", ins); dfc(ins, need - d)
        w = last_w.get("exec")
        if w and w[1].kind in ("valu", "trans") and (k == "mfma" or ins.dpp or ins.op.startswith("v_permlane") or "lane" in ins.op):
            if pos - w[0] < 5: err("exec hazard", ins); dfc(ins, 5 - (pos - w[0]))
        for r in ins.defs:
            w = last_w.get(r)
            if w and w[1].kind == "mfma" and (isv or k in VMK + LGK):
                if pos - w[0] < 8: err(f"WAW hazard on {r} after mfma [{w[1].text}]", ins); dfc(ins, 8 - (pos - w[0]))
            if w and w[1].kind == "mfma" and k == "mfma" and not (ins.srcc == w[1].defs):
                if pos - w[0] < 6: err(f"mfma WAW on {r}", ins); dfc(ins, 6 - (pos - w[0]))
            if isv:
                c = last_srcc.get(r)
                if c is not None and pos - c < 3: err(f"WAR on srcC {r}", ins); dfc(ins, 3 - (pos - c))
            c = last_wst.get(r)
            if c is not None and pos - c < 2: err(f"WAR on store data {r}", ins); dfc(ins, 2 - (pos - c))
        if k == "wait":
            if ins.vm is not None:
                while len(vmq) > ins.vm: vmq.pop(0)
            if ins.lg is not None:
                if any(o.kind == "smem" for o in lgq) and ins.lg != 0:
                    err("smem outstanding with counted lgkmcnt", ins)
                while len(lgq) > ins.lg: lgq.pop(0)
        if k in VMK:
            vmq.append(ins); maxvm = max(maxvm, len(vmq))
            if len(vmq) > 63: err("vmcnt overflow", ins)
        if k in LGK:
            lgq.append(ins)
            n = sum(2 if (o.kind == "smem" and o.op != "s_load_dword") else 1 for o in lgq)
            maxlg = max(maxlg, n)
            if n > 15: err("lgkmcnt overflow", ins)
        pos += ins.nops
        if k in ("valu", "trans", "mfma", "salu"):
            for r in ins.defs: last_w[r] = (pos, ins)
        elif k in ("vm_ld", "ds_r", "smem"):
            for r in ins.defs: last_w.pop(r, None)
        if k == "mfma":
            for r in ins.srcc: last_srcc[r] = pos
        if ins.wide_store:
            for r in ins.uses[:4]: last_wst[r] = pos
    return errs


def autonop(seq, prefix=()):
    prefix = list(prefix)[-40:]
    for _ in range(10000):
        d = []
        validate(prefix + list(seq), deficits=d)
        ids = {id(x): k for k, x in enumerate(seq)}
        d = [(ids[id(i)], n) for i, n in d if id(i) in ids]
        if not d: return
        k = min(x[0] for x in d)
        n = max(x[1] for x in d if x[0] == k)
        seq.insert(k, I(f"s_nop {n - 1}"))
    raise RuntimeError("autonop")


def need_states(p, c):
    d = []
    validate([p, c], deficits=d)
    return max([n for i, n in d if i is c], default=0)


class Seq(list):
    def e(self, text, tag=None):
        if isinstance(text, I):
            self.append(text); return text
        if isinstance(text, (list, tuple)):
            for x in text: self.e(x)
            return text
        i = I(text, tag); self.append(i); return i
    def es(self, block):
        out = []
        for ln in block.strip().split("\n"):
            ln = ln.strip()
            if ln and not ln.startswith(";"):
                out.append(self.e(ln))
        return out
    def text(self):
        return "\n".join((i.text if i.kind == "label" else "    " + i.text) for i in self) + "\n"


def srd(q, d, b, nbytes, off=None):
    if off is None:
        q.e(f"s_mov_b32 {s(d)}, {s(b)}")
        q.e(f"s_mov_b32 {s(d+1)}, {s(b+1)}")
    else:
        q.e(f"s_add_u32 {s(d)}, {s(b)}, {off}")
        q.e(f"s_addc_u32 {s(d+1)}, {s(b+1)}, 0")
    q.e(f"s_mov_b32 {s(d+2)}, {nbytes}")
    q.e(f"s_mov_b32 {s(d+3)}, 0x00020000")


def kernel_text(name, body, vgpr, agpr=0, sgpr=102):
    acc = (vgpr + 3) // 4 * 4
    nfv = acc + agpr if agpr else vgpr
    t = f".text\n.globl {name}\n.p2align 8\n.type {name},@function\n{name}:\n" + body
    d = (f".section .rodata,\"a\"\n.p2align 6\n.amdhsa_kernel {name}\n"
         f"  .amdhsa_next_free_vgpr {nfv}\n  .amdhsa_next_free_sgpr {sgpr}\n  .amdhsa_accum_offset {acc}\n"
         "  .amdhsa_group_segment_fixed_size 0\n  .amdhsa_kernarg_size 104\n  .amdhsa_user_sgpr_count 2\n"
         "  .amdhsa_user_sgpr_kernarg_segment_ptr 1\n  .amdhsa_system_sgpr_workgroup_id_x 1\n.end_amdhsa_kernel\n")
    return t, d


STAMP = {"on": False}
WS_STAMP = 64 << 20
def stamp(q, kern, j, ws=4, vt=None):
    if not STAMP["on"]: return
    q.e("s_memrealtime s[90:91]")
    q.e("s_memtime s[88:89]")
    q.e(f"s_add_u32 s92, s{ws}, {WS_STAMP + kern * 4096 * 128 + j * 8}")
    q.e(f"s_addc_u32 s93, s{ws+1}, 0")
    q.e("s_mov_b32 s94, 0x100000")
    q.e("s_mov_b32 s95, 0x00020000")
    q.e("s_lshl_b32 s96, s2, 7")
    q.e("s_waitcnt lgkmcnt(0)")
    q.e(f"v_mov_b32 v{vt}, s90")
    q.e(f"v_mov_b32 v{vt+1}, s88")
    q.e(f"v_mov_b32 v{vt+2}, 0")
    q.e(f"buffer_store_dwordx2 v[{vt}:{vt+1}], v{vt+2}, s[92:95], s96 offen")


def stamp1(kern, j, reg, ws=4):
    if not STAMP.get("fine"): return []
    mv = "v_accvgpr_write_b32" if reg[0] == "a" else "v_mov_b32"
    return [I(x) for x in (
        "s_waitcnt lgkmcnt(0)", "s_memrealtime s[90:91]", "s_memtime s[88:89]",
        f"s_add_u32 s92, s{ws}, {WS_STAMP + kern * 4096 * 128 + j * 8}", f"s_addc_u32 s93, s{ws+1}, 0",
        "s_mov_b32 s94, 0x100000", "s_mov_b32 s95, 0x00020000", "s_lshl_b32 s96, s2, 7", "s_waitcnt lgkmcnt(0)",
        f"{mv} {reg}, s90", "s_nop 1", f"buffer_store_dword {reg}, off, s[92:95], s96",
        f"{mv} {reg}, s88", "s_nop 1", f"buffer_store_dword {reg}, off, s[92:95], s96 offset:4")]
```

```python
from asmlib import *
from gen_small import allreduce, rnd_bf16, unpack, MB, LOG2E
from gen_k1 import (Sched, MF, P0, SR, NM, LM, ONES, LV, KA, VA, KD, VD, VL16, WF, QF, KF_, VF,
                    SRD_K, SRD_V, SRD_W, SRD_X, SRD_O, S_W, S_WB, S_K0, S_K1, S_V0, S_V1, S_CNT, S_FB, S_Q,
                    SLOT, C_SCALE, Preg, Sreg, Oreg, Qreg, Kf, Vf, qk_mfma, pv_mfma, sum_mfma, k_read, v_read,
                    exp_i, cvt_i, add_i, k_dma, v_dma, m0_set)

WS_XN = 0
WS_ST = 2 * MB
WS_KEY = 2 * MB + 16384
WS_ATT = 2 * MB + 32768
WS_FF = 2 * MB + 65536 - 1024
WS_YP = 2 * MB + 65536
WS_OF = 8 * MB
NFF = 172
LA, LB, LC, LD, LE = 0, SLOT, 2 * SLOT, 3 * SLOT, 4 * SLOT
XSLOT = [LB, LC, LA]
G_IMG, U_IMG, D_IMG, XS_IMG = LE, LE + 8256, LE + 16640, LE + 24832
LDS_FLAG = LE + 31744
CSB = LD
S_WB4, S_W24 = 6, 7
S_H, S_QBLK = 28, 29
S_NL2E = 36
SRD_D, SRD_L = 44, 48
A_X, A_K, A_V, A_WQ, A_WO, A_WR, A_WG, A_WU, A_WD, A_OUT, A_DBG = 60, 62, 64, 66, 68, 72, 74, 76, 78, 80, 82
M_W0L0 = 84
S_KEY, S_IDXO = 86, 87
M_W0 = 62
M_NW0 = 64
S_SPIN, S_T = 66, 67
S_QB, S_WOOFF = 70, 71
S_XO0, S_XO1 = 72, 73
WA, XA, XD, WD = 196, 200, 208, 212
STAT = 208
VPOLL = 223
VA0 = 223
CSV = 128
XBUF = [("a", 192), ("v", 128), ("a", 224), ("v", 160)]
CSA = 128
FLAGV = 0x80808080
SPIN_LIMIT = 200000


def silu_list(dst, src, tmp, n):
    z = Seq()
    for i in range(n): z.e(f"v_mul_f32 {v(tmp+i)}, s{S_NL2E}, {v(src+i)}")
    for i in range(n): z.e(f"v_exp_f32 {v(tmp+i)}, {v(tmp+i)}")
    for i in range(n): z.e(f"v_add_f32 {v(tmp+i)}, 1.0, {v(tmp+i)}")
    for i in range(n): z.e(f"v_rcp_f32 {v(tmp+i)}, {v(tmp+i)}")
    for i in range(n): z.e(f"v_mul_f32 {v(tmp+i)}, {v(tmp+i)}, {v(src+i)}")
    for i in range(0, n, 2): z.e(f"v_cvt_pk_bf16_f32 {v(tmp+i)}, {v(tmp+i)}, {v(tmp+i+1)}")
    for i in range(0, n, 2):
        z.e(f"v_lshlrev_b32 {v(dst+i)}, 16, {v(tmp+i)}")
        z.e(f"v_and_b32 {v(dst+i+1)}, 0xffff0000, {v(tmp+i)}")
    return z


def masked(mask, ins):
    return [I(f"s_mov_b64 exec, {mask}"), ins, I("s_mov_b64 exec, -1")]


class Chain:
    def __init__(self, sch, g):
        self.s = sch; self.g = g; self.hist = []
    def put(self, ins, gap=0):
        if isinstance(ins, str): ins = I(ins)
        first = ins[0] if isinstance(ins, list) else ins
        g = self.g + gap
        members = ins if isinstance(ins, list) else [ins]
        for pg, p in self.hist[-12:]:
            for m in members:
                g = max(g, pg + need_states(p, m))
        kinds = [m.kind for m in members]
        if any(k in ("vm_ld", "vm_st", "dma") for k in kinds):
            g = self.s.put_mem(self._after(g, 1), ins, cost=2, exact=False); cls = 1
        elif any(k in ("ds_r", "ds_w") for k in kinds):
            g = self.s.put_mem(self._after(g, 1), ins, cost=1, exact=False); cls = 1
        elif first.kind in ("valu", "trans"):
            g = self.s.put_va(g, ins, cost=2 if first.kind == "trans" else 1); cls = 2
        else:
            g = self.s.put_sc(self._after(g, 0), ins); cls = 0
        self.g = g; self.cls = cls
        for m in members: self.hist.append((g, m))
        return ins
    def _after(self, g, cls):
        if self.hist and g == self.g and getattr(self, "cls", 0) > cls: return g + 1
        return g


def gen_f(nu=2, dma_pos=None, qko="snake", pvo="snake", xread=None, xdma=None, poll_blk=12, early=2,
          stream_at=2, depth=8, pf=5):
    q = Seq()
    q.e("s_cmp_ge_u32 s2, 256")
    q.e("s_cbranch_scc1 F_END")
    q.e("s_load_dwordx16 s[60:75], s[0:1], 0")
    q.e("s_load_dwordx8 s[76:83], s[0:1], 64")
    q.e("s_load_dwordx2 s[4:5], s[0:1], 96")
    if pf:
        q.e("s_getpc_b64 s[98:99]")
        q.e("F_PC0:")
        q.e("v_lshlrev_b32 v104, 7, v0")
        q.e("global_load_dword v105, v104, s[98:99]")
        if pf & 2:
            q.e("v_add_u32 v106, 0x8000, v104")
            q.e("v_min_u32 v106, F_FB-F_PC0-4, v106")
            q.e("global_load_dword v107, v106, s[98:99]")
        q.e("s_add_u32 s100, s98, F_EPI-F_PC0")
        q.e("s_addc_u32 s101, s99, 0")
    q.e("v_lshrrev_b32 v1, 6, v0")
    q.e("v_and_b32 v2, 63, v0")
    q.e(f"v_readfirstlane_b32 s{S_W}, v1")
    q.e(f"s_and_b32 s{S_H}, s2, 31")
    q.e(f"s_lshr_b32 s{S_QBLK}, s2, 5")
    q.e("v_lshrrev_b32 v3, 4, v2")
    q.e("v_and_b32 v4, 15, v2")
    q.e(f"v_lshlrev_b32 v{VL16}, 4, v2")
    q.e("s_lshl_b32 s42, s2, 3")
    q.e(f"s_lshl_b32 s43, s{S_W}, 1")
    q.e("s_add_u32 s42, s42, s43")
    q.e("s_lshl_b32 s43, s42, 10")
    q.e(f"v_add_u32 v5, s43, v{VL16}")
    q.e("v_lshlrev_b32 v6, 2, v3")
    q.e("v_xor_b32 v6, v4, v6")
    q.e("v_lshlrev_b32 v6, 4, v6")
    q.e("v_lshl_add_u32 v7, v1, 4, v3")
    q.e(f"v_lshl_add_u32 v{WD}, v7, 13, v6")
    for k in range(1, 4): q.e(f"v_add_u32 v{WD+k}, {k*31744}, v{WD}")
    q.e("v_and_b32 v6, 7, v2")
    q.e("v_xor_b32 v6, v6, v3")
    q.e("v_lshlrev_b32 v6, 4, v6")
    q.e("v_lshrrev_b32 v7, 3, v2")
    q.e(f"v_lshl_add_u32 v{XD}, v7, 10, v6")
    q.e(f"v_xor_b32 v6, 64, v{XD}")
    q.e(f"v_add_u32 v{XD+1}, 7168, v6")
    q.e(f"v_add_u32 v{XD+2}, 14336, v{XD}")
    q.e(f"v_add_u32 v{XD+3}, 14336, v{XD+1}")
    q.e(f"s_lshl_b32 s{S_WB}, s{S_W}, 13")
    q.e(f"s_lshl_b32 s{S_WB4}, s{S_W}, 12")
    q.e(f"s_lshl_b32 s52, s{S_H}, 8")
    q.e(f"s_lshl_b32 s53, s{S_QBLK}, 2")
    q.e(f"s_add_u32 s53, s53, s{S_W}")
    q.e("s_lshl_b32 s54, s53, 16")
    q.e("s_waitcnt lgkmcnt(0)")
    stamp(q, 2, 0, vt=100)
    lA = q.e(f"global_load_dwordx4 v[8:11], v5, s[{A_X}:{A_X+1}]")
    lB = q.e(f"global_load_dwordx4 v[12:15], v5, s[{A_X}:{A_X+1}] offset:1024")
    lW = q.e(f"global_load_dwordx4 v[16:19], v{VL16}, s[{A_WR}:{A_WR+1}]")
    q.e(f"s_add_u32 s{SRD_W}, s{A_WQ}, s52")
    q.e(f"s_addc_u32 s{SRD_W+1}, s{A_WQ+1}, 0")
    q.e(f"s_sub_u32 s{SRD_W+2}, {4*MB}, s52")
    q.e(f"s_mov_b32 s{SRD_W+3}, 0x00020000")

    def w_dma(z_sc, z_mem, j):
        z_sc(I(f"s_mov_b32 s43, {j * 524288}"))
        z_sc(I(f"s_add_u32 m0, s{S_WB4}, {LD + (j & 3) * 16384}"))
        return [z_mem(I(f"buffer_load_dwordx4 v{WD+k}, {s(SRD_W,4)}, s43 offen offset:{k*1024} lds")) for k in range(4)]
    def x_dma(z_sc, z_mem, j):
        out = []
        z_sc(I(f"s_mov_b32 s{S_XO0}, {j * 128}"))
        z_sc(I(f"s_mov_b32 s{S_XO1}, {j * 128 + 32768}"))
        for hh in range(2):
            z_sc(m0_set(XSLOT[j % 3] + hh * 4096))
            for k in range(4):
                out.append(z_mem(I(f"buffer_load_dwordx4 v{XD+k}, {s(SRD_X,4)}, s{S_XO0+hh} offen offset:{k*1024} lds")))
        return out
    def lin_mem(ins):
        if q[-1].defs and "m0" in q[-1].defs: q.e("s_nop 0")
        q.e(ins); return ins
    wq = {}; xq = {}
    wq[0] = w_dma(q.e, lin_mem, 0)
    srd(q, SRD_X, A_X, 65536, off="s54")
    xq[0] = x_dma(q.e, lin_mem, 0)
    if early >= 2:
        wq[1] = w_dma(q.e, lin_mem, 1)
        xq[1] = x_dma(q.e, lin_mem, 1)
    q.e(f"s_lshl_b32 s54, s{S_H}, 19")
    srd(q, SRD_K, A_K, 524288, off="s54")
    srd(q, SRD_V, A_V, 524288, off="s54")
    q.e("s_lshl_b32 s54, s53, 19")
    q.e(f"s_lshl_b32 s55, s{S_H}, 12")
    q.e("s_add_u32 s54, s54, s55")
    q.e(f"s_add_u32 s54, s54, {WS_OF}")
    srd(q, SRD_O, 4, 3 * 131072 + 4096, off="s54")
    srd(q, SRD_D, A_DBG, 256)
    srd(q, SRD_L, 4, 4 * MB)
    q.e(f"s_mov_b32 s{S_NL2E}, {LOG2E | 0x80000000}")
    q.e(f"s_mov_b32 s{S_FB}, 0")
    q.e(f"s_mul_i32 s{S_W24}, s{S_W}, 24576")
    q.e(f"s_cmp_eq_u32 s{S_W}, 0")
    q.e(f"s_cselect_b64 s[{M_W0L0}:{M_W0L0+1}], 1, 0")
    q.e(f"s_cselect_b64 s[{M_W0}:{M_W0+1}], -1, 0")
    q.e(f"s_cselect_b64 s[{M_NW0}:{M_NW0+1}], 0, -1")
    q.e(f"s_mov_b32 s{S_SPIN}, 0")
    q.e(f"s_and_b32 s{S_QB}, s2, 7")
    q.e(f"s_lshl_b32 s{S_QB}, s{S_QB}, 2")
    q.e("s_bfe_u32 s54, s2, 0x20003")
    q.e(f"s_add_u32 s{S_QB}, s{S_QB}, s54")
    q.e(f"s_lshl_b32 s{S_WOOFF}, s{S_QBLK}, 7")
    q.e(f"s_lshl_b32 s54, s{S_W}, 20")
    q.e(f"s_add_u32 s{S_WOOFF}, s{S_WOOFF}, s54")
    q.e("v_xor_b32 v6, v3, v4")
    q.e("v_lshlrev_b32 v7, 8, v4")
    for t in range(4):
        q.e(f"v_add_u32 v20, {t}, v1")
        q.e("v_and_b32 v20, 3, v20")
        q.e("v_lshlrev_b32 v21, 2, v20")
        q.e("v_xor_b32 v21, v21, v6")
        q.e(f"v_lshl_add_u32 v{KA+t}, v21, 4, v7")
        q.e(f"v_mov_b32 v{24+t}, v20")
    q.e("v_lshlrev_b32 v7, 13, v1")
    q.e("v_lshl_add_u32 v7, v3, 8, v7")
    for j in range(4):
        q.e(f"v_add_u32 v20, {4*j}, v3")
        q.e("v_xor_b32 v20, v20, v4")
        q.e(f"v_lshl_add_u32 v{KD+j}, v20, 4, v7")
    for j in range(2):
        q.e(f"v_add_u32 v20, {4*j}, v3")
        q.e("v_lshlrev_b32 v20, 1, v20")
        q.e("v_xor_b32 v20, v20, v4")
        q.e(f"v_lshl_add_u32 v{VD+j}, v20, 4, v7")
    q.e("v_bfe_u32 v6, v2, 2, 2")
    q.e("v_and_b32 v20, 3, v2")
    q.e("v_lshl_add_u32 v7, v3, 3, v6")
    q.e("v_lshlrev_b32 v7, 8, v7")
    q.e("v_lshl_add_u32 v7, v20, 4, v7")
    q.e(f"v_add_u32 v7, {LD}, v7")
    for s_ in range(4):
        q.e(f"v_xor_b32 v20, v{24+s_}, v6")
        q.e(f"v_lshl_add_u32 v{WA+s_}, v20, 6, v7")
    q.e("v_lshrrev_b32 v6, 1, v4")
    q.e("v_xor_b32 v6, v6, v3")
    q.e("v_lshlrev_b32 v7, 13, v1")
    q.e("v_lshl_add_u32 v7, v4, 7, v7")
    q.e(f"v_lshl_add_u32 v{XA}, v6, 4, v7")
    q.e(f"v_xor_b32 v{XA+1}, 64, v{XA}")
    q.e(f"v_add_u32 v{XA+2}, 0x10000, v{XA}")
    q.e(f"v_add_u32 v{XA+3}, 0x10000, v{XA+1}")
    for r in range(4): q.e(f"v_mov_b32 v{ONES+r}, 0x3f803f80")
    q.e(f"s_mov_b32 s{S_K0}, 0")
    q.e(f"s_mov_b32 s{S_K1}, 4096")
    q.e(f"s_mov_b32 s{S_V0}, 0")
    q.e(f"s_mov_b32 s{S_V1}, 4096")
    q.e("s_lshl_b32 s56, s42, 10")
    q.e("s_lshr_b32 s57, s42, 6")
    q.e("s_lshl_b32 s57, s57, 9")
    q.e("s_and_b32 s54, s42, 15")
    q.e("s_lshl_b32 s54, s54, 5")
    q.e("s_add_u32 s57, s57, s54")
    q.e("s_bfe_u32 s54, s42, 0x20004")
    q.e("s_lshl_b32 s54, s54, 3")
    q.e("s_add_u32 s57, s57, s54")
    q.e(f"s_add_u32 s57, s57, {WS_ST}")
    q.e("s_lshl_b32 s58, s42, 1")
    q.e(f"s_add_u32 s58, s58, {WS_KEY}")
    q.e(f"s_lshl_b32 s59, s{S_QBLK}, 8")
    q.e(f"s_lshl_b32 s54, s{S_H}, 2")
    q.e("s_add_u32 s59, s59, s54")
    q.e(f"s_add_u32 s59, s59, {WS_ATT}")
    q.e(f"s_add_u32 s55, s2, {WS_FF}")
    q.e("v_mov_b32 v22, 0")

    ln = Seq()
    PK = [8, 12]; XF = [32, 40]; DF = [48, 56]; M_ = [64, 65]; T_ = [66, 67]; VR = [68, 69]; U_ = [70, 71]
    def both(f):
        for k in range(2): ln.e(f(k))
    ln.e(wait(vm=[lA, lB]))
    stamp(ln, 2, 1, vt=100)
    for k in range(2): unpack(ln, XF[k], PK[k], 4)
    both(lambda k: f"v_add_f32 v{M_[k]}, v{XF[k]}, v{XF[k]+1}")
    both(lambda k: f"v_add_f32 v{T_[k]}, v{XF[k]+2}, v{XF[k]+3}")
    both(lambda k: f"v_add_f32 v{VR[k]}, v{XF[k]+4}, v{XF[k]+5}")
    both(lambda k: f"v_add_f32 v{U_[k]}, v{XF[k]+6}, v{XF[k]+7}")
    both(lambda k: f"v_add_f32 v{M_[k]}, v{M_[k]}, v{T_[k]}")
    both(lambda k: f"v_add_f32 v{VR[k]}, v{VR[k]}, v{U_[k]}")
    both(lambda k: f"v_add_f32 v{M_[k]}, v{M_[k]}, v{VR[k]}")
    allreduce(ln, M_, T_)
    both(lambda k: f"v_mul_f32 v{M_[k]}, 0x3b000000, v{M_[k]}")
    for i in range(8): both(lambda k: f"v_sub_f32 v{DF[k]+i}, v{XF[k]+i}, v{M_[k]}")
    both(lambda k: f"v_mul_f32 v{VR[k]}, v{DF[k]}, v{DF[k]}")
    both(lambda k: f"v_mul_f32 v{U_[k]}, v{DF[k]+1}, v{DF[k]+1}")
    for i in range(2, 8, 2):
        both(lambda k: f"v_fmac_f32 v{VR[k]}, v{DF[k]+i}, v{DF[k]+i}")
        both(lambda k: f"v_fmac_f32 v{U_[k]}, v{DF[k]+i+1}, v{DF[k]+i+1}")
    both(lambda k: f"v_add_f32 v{VR[k]}, v{VR[k]}, v{U_[k]}")
    both(lambda k: f"v_cvt_pk_bf16_f32 v{M_[k]}, v{M_[k]}, v{M_[k]}")
    both(lambda k: f"v_lshlrev_b32 v{M_[k]}, 16, v{M_[k]}")
    allreduce(ln, VR, T_)
    def rnd2(R):
        both(lambda k: f"v_cvt_pk_bf16_f32 v{R[k]}, v{R[k]}, v{R[k]}")
        both(lambda k: f"v_lshlrev_b32 v{R[k]}, 16, v{R[k]}")
    both(lambda k: f"v_mul_f32 v{VR[k]}, 0x3b000000, v{VR[k]}")
    rnd2(VR)
    both(lambda k: f"v_add_f32 v{VR[k]}, 0x3727c5ac, v{VR[k]}")
    rnd2(VR)
    both(lambda k: f"v_sqrt_f32 v{VR[k]}, v{VR[k]}")
    for i in range(8): both(lambda k: f"v_sub_f32 v{DF[k]+i}, v{XF[k]+i}, v{M_[k]}")
    rnd2(VR)
    both(lambda k: f"v_rcp_f32 v{VR[k]}, v{VR[k]}")
    for i in range(4): both(lambda k: f"v_cvt_pk_bf16_f32 v{PK[k]+i}, v{DF[k]+2*i}, v{DF[k]+2*i+1}")
    ST2 = [72, 74]
    both(lambda k: f"v_sub_f32 v{ST2[k]}, 0, v{M_[k]}")
    both(lambda k: f"v_mul_f32 v{ST2[k]+1}, {hex(C_SCALE)}, v{VR[k]}")
    lnst = []
    ln.e("s_mov_b64 exec, 1")
    lnst.append(ln.e(f"buffer_store_dwordx2 v[72:73], off, {s(SRD_L,4)}, s57 sc1"))
    lnst.append(ln.e(f"buffer_store_dwordx2 v[74:75], off, {s(SRD_L,4)}, s57 offset:32 sc1"))
    ln.e(f"s_mov_b64 exec, s[{M_W0L0}:{M_W0L0+1}]")
    lnst.append(ln.e(f"buffer_store_dword v22, off, {s(SRD_L,4)}, s59 sc1"))
    lnst.append(ln.e(f"buffer_store_byte v22, off, {s(SRD_L,4)}, s55 sc1"))
    ln.e("s_mov_b64 exec, -1")
    for k in range(2): unpack(ln, XF[k], PK[k], 4)
    for i in range(8): both(lambda k: f"v_mul_f32 v{XF[k]+i}, v{XF[k]+i}, v{VR[k]}")
    for i in range(4): both(lambda k: f"v_cvt_pk_bf16_f32 v{PK[k]+i}, v{XF[k]+2*i}, v{XF[k]+2*i+1}")
    lnst.append(ln.e(f"buffer_store_dwordx4 v[8:11], v{VL16}, {s(SRD_L,4)}, s56 offen sc1"))
    lnst.append(ln.e(f"buffer_store_dwordx4 v[12:15], v{VL16}, {s(SRD_L,4)}, s56 offen offset:1024 sc1"))
    for k in range(2): unpack(ln, XF[k], PK[k], 4)
    ln.e(wait(vm=[lW]))
    unpack(ln, 48, 16, 4)
    both(lambda k: f"v_mul_f32 v{M_[k]}, v{XF[k]}, v48")
    both(lambda k: f"v_mul_f32 v{U_[k]}, v{XF[k]+1}, v49")
    for i in range(2, 8, 2):
        both(lambda k: f"v_fmac_f32 v{M_[k]}, v{XF[k]+i}, v{48+i}")
        both(lambda k: f"v_fmac_f32 v{U_[k]}, v{XF[k]+i+1}, v{49+i}")
    both(lambda k: f"v_add_f32 v{M_[k]}, v{M_[k]}, v{U_[k]}")
    allreduce(ln, M_, T_)
    rnd2(M_)
    both(lambda k: f"v_ashrrev_i32 v{T_[k]}, 31, v{M_[k]}")
    both(lambda k: f"v_or_b32 v{T_[k]}, 0x80000000, v{T_[k]}")
    both(lambda k: f"v_xor_b32 v{M_[k]}, v{M_[k]}, v{T_[k]}")
    ln.e("s_sub_u32 s54, 0xffff, s42")
    ln.e("s_sub_u32 s52, s54, 1")
    both(lambda k: f"v_and_b32 v{M_[k]}, 0xffff0000, v{M_[k]}")
    ln.e(f"v_or_b32 v{M_[0]}, s54, v{M_[0]}")
    ln.e(f"v_or_b32 v{M_[1]}, s52, v{M_[1]}")
    ln.e(f"v_max_u32 v{M_[0]}, v{M_[0]}, v{M_[1]}")
    ln.e("s_mov_b64 exec, 1")
    lnst.append(ln.e(f"buffer_store_dword v{M_[0]}, off, {s(SRD_L,4)}, s58 sc1"))
    ln.e("s_mov_b64 exec, -1")
    autonop(ln, q)
    q.extend(ln)
    stamp(q, 2, 2, vt=100)
    if early < 2:
        wq[1] = w_dma(q.e, lin_mem, 1)
        xq[1] = x_dma(q.e, lin_mem, 1)
    wq[2] = w_dma(q.e, lin_mem, 2)
    xq[2] = x_dma(q.e, lin_mem, 2)
    wq[3] = w_dma(q.e, lin_mem, 3)

    def xreg(j, qt, tt):
        p, b = XBUF[j & 3]
        return rng(p, b + (qt * 2 + tt) * 4, 4)
    def x_read(j, qt, tt):
        sl = XSLOT[j % 3]
        if sl == LC: return I(f"ds_read_b128 {xreg(j, qt, tt)}, v{XA+2+tt} offset:{qt*2048}")
        return I(f"ds_read_b128 {xreg(j, qt, tt)}, v{XA+tt} offset:{sl + qt*2048}")
    NB = 32
    def frags(n):
        if n < 24: return [(n >> 2, n & 3, p, tt) for p in range(2) for tt in range(2)]
        dt = n - 24
        return [(6 + (f >> 1), dt >> 1, dt & 1, f & 1) for f in range(4)]
    def w_read(dst, fr, x):
        j, s_, p, tt = fr
        return I(f"ds_read_b64_tr_b16 {dst}, v{WA+s_} offset:{(j & 3)*16384 + tt*8192 + x*1024 + 8*p}")
    def wreg(n, f): return WF + (n & 1) * 16 + 4 * f
    XTRA = 192
    mf = []; G = []; last = {}
    for n in range(NB):
        G.append(len(mf))
        fr = frags(n)
        if n < 24 and (n & 3) == 0:
            for f, (j, s_, p, tt) in enumerate(fr):
                d = a(CSA + 4 * p, 4)
                mf.append(I(f"{MF} {d}, {v(wreg(n, f), 4)}, {v(ONES, 4)}, {'0' if (j == 0 and tt == 0) else d}"))
        if n == 24:
            for f in range(4):
                d = a(CSA, 4); mf.append(I(f"{MF} {d}, {v(wreg(n, f), 4)}, {v(ONES, 4)}, {d}"))
            for f in range(4):
                d = a(CSA + 4, 4); mf.append(I(f"{MF} {d}, {a(XTRA + 4*f, 4)}, {v(ONES, 4)}, {d}"))
            gcs = len(mf) - 1
        if n < 24:
            order = [(p * 2 + tt, qt) for p in range(2) for qt in range(4) for tt in range(2)]
        else:
            order = [(f, qt) for qt in range(4) for f in range(4)]
        for f, qt in order:
            j, s_, p, tt = fr[f]
            dt = 2 * s_ + p
            d = v((dt * 4 + qt) * 4, 4)
            mf.append(I(f"{MF} {d}, {v(wreg(n, f), 4)}, {xreg(j, qt, tt)}, {'0' if (j == 0 and tt == 0) else d}"))
            last[(dt, qt)] = len(mf) - 1
    G.append(len(mf))
    NM_ = len(mf)
    sch = Sched(NM_)
    q.e(wait(vm=wq[0] + xq[0]))
    q.e("s_barrier")
    for f in range(4):
        for x in range(2): q.e(w_read(v(wreg(0, f) + 2 * x, 2), frags(0)[f], x))
    r0 = [q.e(x_read(0, qt, tt)) for qt in range(2) for tt in range(2)]
    q.e("s_waitcnt lgkmcnt(4)")
    for qt in range(2, 4):
        for tt in range(2): q.e(x_read(0, qt, tt))
    q.e("s_waitcnt lgkmcnt(0)")
    stamp(q, 2, 3, vt=160)
    forb = set()
    for n in range(NB):
        forb |= {G[n], G[n + 1] - 2, G[n + 1] - 1}
        if n + 1 < NB:
            for f in range(4):
                for x in range(2):
                    sch.put_mem(G[n] + 1 + 2 * f, w_read(v(wreg(n + 1, f) + 2 * x, 2), frags(n + 1)[f], x))
                forb.add(G[n] + 1 + 2 * f)
    xt = []
    for f in range(4):
        for x in range(2):
            i_ = w_read(a(XTRA + 4 * f + 2 * x, 2), frags(25)[f], x); xt.append(i_)
            sch.put_mem(G[23] + 9 + f, i_)
        forb.add(G[23] + 9 + f)
    if xread is None: xread = {1: 2, 2: 5, 3: 9, 4: 12, 5: 15, 6: 19, 7: 22}
    if xdma is None: xdma = {j + 3: xread[j] + 1 for j in range(1, 5)}; xdma[3] = 0
    xwait = {}
    for j, n in xread.items():
        g0 = G[n + 1] - 8
        xwait[j] = wait(vm=[], lgn=4)
        sch.put_sc(g0 - 1 if (g0 - 1) not in forb else g0, xwait[j], exact=True)
        k = 0
        for qt in range(4):
            for tt in range(2):
                sch.put_mem(g0 + 1 + (k >> 1), x_read(j, qt, tt)); k += 1
        forb |= {g0 - 1, g0, g0 + 1, g0 + 2, g0 + 3, g0 + 4}
    def issuer(start):
        st = {"g": start}
        def z_sc(ins):
            g = st["g"]
            while sch.mem[g] or sch.sc[g] or g in forb_sc: g += 1
            sch.put_sc(g, ins, exact=True); st["g"] = g + 1; return ins
        def z_mem(ins):
            g = st["g"]
            while g in forb or sch.free(g) < 2 or sch.sc[g]: g += 1
            sch.put_mem(g, ins, cost=2); st["g"] = g + 1; return ins
        return z_sc, z_mem, st
    forb_sc = set()
    for n in range(NB): forb_sc |= {G[n], G[n + 1] - 2, G[n + 1] - 1}
    def kv_dma(z_sc, z_mem, isk, slot):
        out = []
        for j in range(8):
            if j % 4 == 0: z_sc(m0_set(slot * SLOT + (j >> 2) * 4096))
            out.append(z_mem(k_dma(j) if isk else v_dma(j)))
        r0_ = S_K0 if isk else S_V0
        z_sc(I(f"s_add_u32 s{r0_}, s{r0_}, {SLOT}"))
        z_sc(I(f"s_add_u32 s{r0_+1}, s{r0_+1}, {SLOT}"))
        return out
    ev = []
    for j, n in xdma.items(): ev.append((n, 1, "x", j))
    for j in range(4, 8): ev.append((4 * (j - 4) + 3, 2, "w", j))
    ev.append((3, 0, "flag", 0))
    ev.append((poll_blk, 0, "poll", 0))
    ev.append((19, 0, "stat", 0))
    ev.append((max(19, xread[5] + 1), 3, "k", 0))
    ev.append((xread[6] + 1, 3, "k", 1))
    ev.append((xread[7] + 1, 4, "v", 0))
    ev.sort()
    cur = 0
    kv = {}
    poll = I(f"buffer_load_dword v{VPOLL}, v{VPOLL}, {s(SRD_D,4)}, 0 offen sc1")
    stl = [I(f"buffer_load_dwordx4 {v(STAT,4)}, v{STAT+4}, {s(SRD_L,4)}, s42 offen sc1"),
           I(f"buffer_load_dwordx4 {v(STAT+4,4)}, v{STAT+4}, {s(SRD_L,4)}, s42 offen offset:16 sc1")]
    for n, _, kind, j in ev:
        z_sc, z_mem, st = issuer(max(cur, G[n] + 1))
        if kind == "x": xq[j] = x_dma(z_sc, z_mem, j)
        elif kind == "w": wq[j] = w_dma(z_sc, z_mem, j)
        elif kind == "k": kv[("k", j)] = kv_dma(z_sc, z_mem, True, j)
        elif kind == "v": kv[("v", 0)] = kv_dma(z_sc, z_mem, False, 2)
        elif kind == "flag":
            z_mem(masked(f"s[{M_W0L0}:{M_W0L0+1}]", I(f"buffer_store_byte v{ONES}, off, {s(SRD_D,4)}, s2 sc1")))
        elif kind == "poll":
            sch.put_va(G[n] - 8, I(f"v_lshrrev_b32 v{VPOLL}, 2, v{VL16}"))
            z_mem(masked(f"s[{M_W0}:{M_W0+1}]", poll))
        elif kind == "stat":
            g_ = sch.put_va(G[n] - 6, I(f"v_and_b32 v{STAT+4}, 0xf0, v{VL16}"))
            sch.put_va(g_, I(f"v_lshlrev_b32 v{STAT+4}, 1, v{STAT+4}"))
            z_sc(I("s_lshl_b32 s42, s53, 9"))
            z_sc(I(f"s_add_u32 s42, s42, {WS_ST}"))
            for i_ in stl: z_mem(i_)
        cur = st["g"]
        if kind == "w": assert cur < G[18] - 6
    for j in xwait: xwait[j].need_vm = xq[j]
    gp = G[19] - 8
    sch.put_sc(gp, wait(vm=[poll]), exact=True)
    sch.put_va(gp, I(f"v_cmp_eq_u32 vcc, {hex(FLAGV)}, v{VPOLL}"), exact=True)
    sch.put_sc(G[19] - 3, [I(f"s_or_b64 s[54:55], vcc, s[{M_NW0}:{M_NW0+1}]"), I("s_cmp_eq_u64 s[54:55], -1"),
                           I("s_cbranch_scc0 F_SPIN1"), I("F_BACK1:")], exact=True)
    for n in range(NB - 1):
        e2 = G[n + 1] - 2
        if n < 24 and (n & 3) == 2:
            j = n >> 2
            need = list(wq[j + 1]) + (wq[7] if j == 5 else []) + (lnst if j == 0 else [])
            sch.put_sc(e2, stamp1(1, 2 * j, "a190") + [wait(vm=need, lgn=0)], exact=True)
            sch.put_sc(e2 + 1, [I("s_barrier")] + stamp1(1, 2 * j + 1, "a190"), exact=True)
        elif n == 30:
            sch.put_sc(e2, stamp1(1, 13, "a190") + [wait(vm=kv[("k", 0)], lgn=0)], exact=True)
            sch.put_sc(e2 + 1, [I("s_barrier")] + stamp1(1, 14, "a190"), exact=True)
        else:
            sch.put_sc(e2, wait(lgn=0), exact=True)
    sch.put_sc(G[23] + 8, I("s_waitcnt lgkmcnt(4)"), exact=True)
    for r in range(128):
        sch.put_va(G[1], I(f"v_accvgpr_write_b32 {a(r)}, 0"))
    ch = Chain(sch, G[17])
    ch.put(f"v_bfe_u32 v{XD+1}, v{VL16}, 1, 8")
    ch.put(f"v_lshrrev_b32 v{XD+2}, 6, v{VL16}")
    ch.put(f"v_lshl_add_u32 v{XD+1}, v{XD+2}, 8, v{XD+1}")
    ch.put(f"v_add_u32 v{XD+1}, {LC}, v{XD+1}")
    assert ch.g < gp
    sch.put_va(G[19] - 1, I(f"v_mov_b32 v{VA0}, v{XD+1}"), exact=True)
    CW = XA
    ch = Chain(sch, G[xread[6] + 1] + 2)
    ch.put(f"s_lshl_b32 s54, s{S_W}, 7")
    ch.put(f"s_add_u32 s54, s54, {CSB}")
    ch.put(f"v_lshrrev_b32 v{CW}, 8, v{VL16}")
    ch.put(f"v_lshl_add_u32 v{CW}, v{CW}, 5, s54")
    ch.put("s_mov_b32 s54, 0x00010001")
    ch.put("s_mov_b32 s55, 0x00010001")
    assert ch.g < gcs
    gw = gcs + 4
    csw = [I(f"ds_write_b128 v{CW}, {a(CSA+4*p,4)} offset:{16*p + 512*dup}") for p in range(2) for dup in range(2)]
    while gw in forb or sch.mem[gw] or sch.sc[gw]: gw += 1
    sch.put_mem(gw, [I("s_mov_b64 exec, s[54:55]")] + csw + [I("s_mov_b64 exec, -1")], cost=2)
    gb = gw + 4
    sch.put_sc(gb, wait(lg=csw), exact=True)
    sch.put_sc(gb + 1, [I("s_barrier")] + stamp1(1, 12, "a190"), exact=True)
    csr = []
    g_ = gb + 2
    for dt in range(8):
        i_ = I(f"ds_read_b128 {v(CSV+4*dt,4)}, v{CW} offset:{(dt>>1)*128 + (dt&1)*16}")
        csr.append(i_)
        g_ = sch.put_mem(g_, i_, exact=False)
    gready = g_ + 4
    gready = sch.put_sc(gready, wait(vm=stl, lg=csr)) + 1
    kr0 = [k_read(0, 0, t) for t in range(4)]
    for t in range(4): sch.put_mem(G[31] + 1 + 2 * (t >> 1), kr0[t])
    groups = []
    for dt in range(8):
        for qt in range(4):
            r = (dt * 4 + qt) * 4
            g0 = max(last[(dt, qt)] + 6, gready)
            d = Qreg(qt, dt >> 1) + 2 * (dt & 1)
            it = ([("fma", e, I(f"v_fma_f32 {v(r+e)}, {v(STAT+2*qt)}, {v(CSV+4*dt+e)}, {v(r+e)}")) for e in range(4)]
                  + [("mul", e, I(f"v_mul_f32 {v(r+e)}, {v(STAT+2*qt+1)}, {v(r+e)}")) for e in range(4)]
                  + [("o", 0, I(f"v_cvt_pk_bf16_f32 {v(r)}, {v(r)}, {v(r+1)}")),
                     ("o", 0, I(f"v_cvt_pk_bf16_f32 {v(r+2)}, {v(r+2)}, {v(r+3)}")),
                     ("o", 0, I(f"v_accvgpr_write_b32 {a(d)}, {v(r)}")),
                     ("o", 0, I(f"v_accvgpr_write_b32 {a(d+1)}, {v(r+2)}"))])
            for _, _, i_ in it: g0 = sch.put_va(g0, i_)
            groups.append((r, dt, qt, it))
    for k, m in enumerate(mf):
        q.e(m)
        for g, it in sch.gap(k): q.e(it)
    tl = Seq()
    intail = {id(x) for x in sch.tail}
    done = set()
    for x in sch.tail:
        if not any(x is i_ for _, _, _, it in groups for _, _, i_ in it): tl.e(x)
    for r, dt, qt, it in groups:
        for kind, e, i_ in it:
            if id(i_) not in intail or id(i_) in done: continue
            if kind in ("fma", "mul") and e % 2 == 0:
                mate = [z for kk, ee, z in it if kk == kind and ee == e + 1][0]
                if id(mate) in intail:
                    done.add(id(mate))
                    if kind == "fma":
                        tl.e(f"v_pk_fma_f32 {v(r+e,2)}, {v(STAT+2*qt,2)}, {v(CSV+4*dt+e,2)}, {v(r+e,2)} op_sel:[0,0,0] op_sel_hi:[0,1,1]")
                    else:
                        tl.e(f"v_pk_mul_f32 {v(r+e,2)}, {v(STAT+2*qt,2)}, {v(r+e,2)} op_sel:[1,0] op_sel_hi:[1,1]")
                    continue
            tl.e(i_)
    autonop(tl, q)
    qtail = len(tl)
    q.extend(tl)
    stamp(q, 2, 4, vt=244)

    wstart = []; pos = 0; mkeys = []
    sumwin = {3: 0, 4: 1, 5: 2, 6: 3}
    for w in range(8):
        wstart.append(pos)
        for qt in range(4):
            for t in range(4): mkeys.append(("qk", w, qt, (3 - t) if (qko == "snake" and qt & 1) else t, t == 0))
        for qt in range(4):
            for u in range(4): mkeys.append(("pv", w, qt, (3 - u) if (pvo == "snake" and not qt & 1) else u))
        pos += 32
        if w in sumwin:
            for u in range(nu): mkeys.append(("sum", sumwin[w], u))
            pos += nu
    PL = pos
    wstart.append(PL)
    def GG(w, g): return wstart[w & 7] + (PL if w >= 8 else 0) + g
    ss = Sched(PL, modulo=True)
    place = {}
    for kb in range(8):
        for e in range(16):
            p = 8 + 2 * e
            g = GG(kb, p) if p < 32 else GG(kb + 1, p - 32)
            place[("exp", kb, e)] = ss.put_va(g, ("exp", kb, e), cost=2, exact=True)
    for w in range(8):
        for t in range(4):
            place[("kr", w + 1, t)] = ss.put_mem(GG(w, 17 + 2 * (t >> 1)), ("kr", w + 1, t))
        for u in range(4):
            for x in range(2):
                g = GG(w, 21 + 2 * u) if u < 2 else GG(w + 1, 2 * u - 3)
                place[("vr", w + 1, u, x)] = ss.put_mem(g, ("vr", w + 1, u, x))
    if dma_pos is None:
        dma_pos = [(w, g) for w in range(4) for g in (5, 9, 25, 29)]
    for j, (w, g) in enumerate(dma_pos):
        isk = j < 8
        if j % 4 == 0:
            ss.put_sc(GG(w, g - 1), ("m0", isk, (j >> 2) & 1), exact=True)
        ss.put_mem(GG(w, g), ("dma", isk, j & 7), cost=2)
        if j % 8 == 7:
            ss.put_sc(GG(w, g + 1), ("soff", isk, 0), exact=True)
            ss.put_sc(GG(w, g + 3), ("soff", isk, 1))
    for w in range(8):
        if w == 7:
            ss.put_sc(GG(w, 12), ("waitbar",), exact=True)
            ss.put_sc(GG(w, 14), ("bar",), exact=True)
        else:
            ss.put_sc(GG(w, 14), ("waitv", w), exact=True)
        ss.put_sc(GG(w, 30), ("waitk", w + 1), exact=True)
    ss.put_sc(GG(5, 2), ("cnt",))
    if pf & 4: ss.put_mem(GG(5, 5), ("pf",), cost=0)
    fifo = []
    for kb in range(8):
        for e in range(16):
            ge = place[("exp", kb, e)]
            if kb >= 2 * nu: fifo.append((ge + 1, ("add", kb, e)))
            if e & 1: fifo.append((ge + 1, ("cvt", kb, e - 1)))
    fifo.sort(key=lambda z: z[0])
    rot = [f for f in fifo if f[1][1] >= 6] + [f for f in fifo if f[1][1] < 6]
    for ge, key in rot:
        place[key] = ss.put_va(ge, key)
    for key, g in place.items():
        if key[0] in ("add", "cvt", "exp"):
            kb, e = key[1], key[2]
            assert g < GG(kb + 2, 4 * (e >> 2)), (key, g)
        if key[0] == "cvt":
            kb, e = key[1], key[2]
            assert g < PL + mkeys.index(("pv", 0, e >> 2, kb >> 1)) - 1, (key, g)
    wrap = {k for k, g in place.items() if g >= PL}

    reads = {}
    def mk(key, par):
        kind = key[0]
        if kind == "qk": return qk_mfma(key[1], key[2], key[3], first=key[4])
        if kind == "pv": return pv_mfma(par, key[1], key[2], key[3])
        if kind == "sum": return sum_mfma(par, key[1], key[2])
        if kind == "exp": return exp_i(key[1], key[2])
        if kind == "cvt": return cvt_i(1 - par, key[1], key[2])
        if kind == "add": return add_i(key[1], key[2])
        if kind == "kr":
            kb = key[1]
            i = k_read((1 - par) if kb < 8 else par, kb & 7, key[2])
            reads.setdefault((par, "k", kb), []).append(i); return i
        if kind == "vr":
            db = key[1]
            i = v_read(par if db < 8 else 1 - par, db & 7, key[2], key[3])
            reads.setdefault((par, "v", db), []).append(i); return i
        if kind == "dma": return k_dma(key[2]) if key[1] else v_dma(key[2])
        if kind == "m0":
            slot = par if key[1] else 2 + (1 - par)
            return m0_set(slot * SLOT + key[2] * 4096)
        if kind == "soff":
            r = (S_K0 if key[1] else S_V0) + key[2]
            return I(f"s_add_u32 s{r}, s{r}, {SLOT}")
        if kind == "waitbar": return wait(vmn=0, lgn=0)
        if kind == "bar": return I("s_barrier")
        if kind == "waitv":
            w = key[1]
            return wait(lg=reads.setdefault((par, "v", w) if w else (1 - par, "v", 8), []))
        if kind == "waitk": return wait(lg=reads.setdefault((par, "k", key[1]), []))
        if kind == "pf": return [I("global_load_dword v241, v240, s[100:101]")] if par == 0 else []
        if kind == "cnt":
            return I(f"s_add_u32 s{S_CNT}, s{S_CNT}, 1") if par == 1 else I(f"s_cmp_eq_u32 s{S_CNT}, 7")
        raise KeyError(key)
    def body(par):
        z = Seq()
        for k in range(PL):
            z.e(mk(mkeys[k], par))
            for g, key in ss.gap(k):
                z.e(mk(key, par if g < PL else 1 - par))
        return z

    e0 = Seq()
    e0.e("F_QK0:")
    e0.e(f"s_mov_b32 s{S_CNT}, 0")
    e0.e(f"s_mov_b32 s42, {WS_KEY}")
    e0.e("s_waitcnt lgkmcnt(0)")
    KV = 64
    keyl = [I(f"buffer_load_dwordx4 {v(KV+4*k,4)}, v{VL16}, {s(SRD_L,4)}, s42 offen offset:{k*1024} sc1") for k in range(4)]
    kr1 = [k_read(0, 1, t) for t in range(4)]
    fill = ([[kr1[t]] for t in range(4)] + [[keyl[k]] for k in range(4)])
    init = ([f"v_mov_b32 v{LV+r}, 0" for r in range(8)] + [f"v_mov_b32 v{LM+r}, 0" for r in range(16)]
            + [f"v_xor_b32 v{VA+db}, {db << 5}, v{VA0}" for db in range(8)] + [f"v_lshrrev_b32 v80, 4, v{VL16}",
               "v_mul_u32_u24 v80, 2752, v80"])
    n_ = 0
    for qt in range(4):
        for t in range(4):
            e0.e(qk_mfma(0, qt, t, czero=True))
            k = qt * 4 + t
            if k < 8:
                e0.e(fill[k]); cnt = 1 if k < 4 else 0
            else: cnt = 2
            for _ in range(cnt):
                if n_ < len(init): e0.e(init[n_]); n_ += 1
    for x in init[n_:]: e0.e(x)
    e0.e(f"s_cmp_lg_u32 s{S_FB}, 0")
    e0.e("s_cbranch_scc1 F_HAVEM")
    mx = Seq()
    T = WF
    for qt in range(4):
        r = Sreg(0, qt)
        mx.e(f"v_max3_f32 v{T+qt}, v{r}, v{r+1}, v{r+2}")
        mx.e(f"v_max_f32 v{T+qt}, v{T+qt}, v{r+3}")
    for sw in ("v_permlane16_swap_b32", "v_permlane32_swap_b32"):
        for qt in range(4): mx.e(f"v_mov_b32 v{T+4+qt}, v{T+qt}")
        for qt in range(4): mx.e(f"{sw} v{T+qt}, v{T+4+qt}")
        for qt in range(4): mx.e(f"v_max_f32 v{T+qt}, v{T+qt}, v{T+4+qt}")
    for qt in range(4):
        for r in range(4): mx.e(f"v_sub_f32 v{NM+4*qt+r}, 0, v{T+qt}")
    autonop(mx, e0)
    e1 = Seq()
    e1.e("F_HAVEM:")
    for r in range(16): e1.e(f"v_add_f32 v{SR+r}, v{SR+r}, v{NM+r}")
    e1.e("s_waitcnt lgkmcnt(0)")
    mf = [qk_mfma(kb, qt, t) for kb in range(1, 8) for qt in range(4) for t in range(4)]
    n = len(mf)
    ps = Sched(n, cap=4)
    GP = lambda kb, g: (kb - 1) * 16 + g
    for kb in range(1, 7):
        rs = [k_read(0, kb + 1, t) for t in range(4)]
        for t in range(4): ps.put_mem(GP(kb, 1 + 2 * (t >> 1)), rs[t])
        if kb < 6: ps.put_sc(GP(kb, 14), wait(lg=rs), exact=True)
    ps.put_sc(GP(6, 14), wait(vmn=0, lgn=0), exact=True)
    ps.put_sc(GP(6, 15), I("s_barrier"), exact=True)
    for t in range(4): ps.put_mem(GP(7, 1 + 2 * (t >> 1)), mk(("kr", 8, t), 1))
    for u in range(4):
        for x in range(2):
            if ("vr", 8, u, x) not in wrap: ps.put_mem(GP(7, 5 + 2 * u), mk(("vr", 8, u, x), 1))
    ch = Chain(ps, 4)
    def srd_grp(d, b, nbytes):
        return [I(f"s_mov_b32 s{d}, s{b}"), I(f"s_mov_b32 s{d+1}, s{b+1}"), I(f"s_mov_b32 s{d+2}, {nbytes}"),
                I(f"s_mov_b32 s{d+3}, 0x00020000")]
    ch.put(srd_grp(SRD_W, A_WG, 512 * 2752))
    ch.put(srd_grp(SRD_X, A_WU, 512 * 2752))
    ch.put(srd_grp(52, A_WD, 1376 * 1024))
    ch.put([I(f"s_mul_i32 s42, s{S_W}, {128*2752}"), I("s_lshl_b32 s43, s2, 4"), I("s_add_u32 s42, s42, s43"),
            I(f"s_add_u32 s43, s42, {64*2752 - 1024}")])
    ch.put([I(f"s_lshl_b32 s56, s{S_W}, 11"), I("s_lshl_b32 s57, s2, 13"), I("s_add_u32 s57, s57, s56")])
    for img, sr in ((G_IMG, SRD_W), (U_IMG, SRD_X)):
        ch.put(f"s_add_u32 m0, s56, {img}")
        ch.put(f"buffer_load_dwordx4 v80, {s(sr,4)}, s42 offen lds", gap=1)
        ch.put(f"buffer_load_dwordx4 v80, {s(sr,4)}, s43 offen offset:1024 lds", gap=1)
    ch.put(f"s_add_u32 m0, s56, {D_IMG}")
    ch.put(f"buffer_load_dwordx4 v{VL16}, s[52:55], s57 offen lds", gap=1)
    ch.put(f"buffer_load_dwordx4 v{VL16}, s[52:55], s57 offen offset:1024 lds", gap=1)
    ch = Chain(ps, GP(4, 4))
    ch.put(wait(vm=keyl))
    kz = Seq()
    for k in range(4): kz.e(f"v_max3_u32 v{KV+4*k}, v{KV+4*k}, v{KV+4*k+1}, v{KV+4*k+2}")
    kz.e(f"v_max3_u32 v{KV}, v{KV}, v{KV+3}, v{KV+4}")
    kz.e(f"v_max3_u32 v{KV+8}, v{KV+8}, v{KV+7}, v{KV+11}")
    kz.e(f"v_max3_u32 v{KV}, v{KV}, v{KV+12}, v{KV+15}")
    kz.e(f"v_max_u32 v{KV}, v{KV}, v{KV+8}")
    allreduce(kz, [KV], [KV + 1], op="v_max_u32")
    kz.e(f"v_readfirstlane_b32 s{S_KEY}, v{KV}")
    for i_ in kz:
        if i_.kind != "nop": ch.put(i_)
    ch.put([I(f"s_and_b32 s{S_IDXO}, s{S_KEY}, 0xffff"), I(f"s_sub_u32 s{S_IDXO}, 0xffff, s{S_IDXO}"),
            I(f"s_lshl_b32 s{S_IDXO}, s{S_IDXO}, 10")])
    assert ch.g < n
    if pf & 4:
        ch.put(f"v_lshl_add_u32 v240, v{VL16}, 3, s{S_WB}")
        ch.put("v_min_u32 v240, F_FB-F_EPI-4, v240")
    pl2 = {}
    cur = 0
    for kb in range(8):
        for e in range(16):
            rdy = 0 if kb == 0 else GP(kb, 4 * (e >> 2) + 3 + 4)
            keys = [("exp", kb, e)] + ([("add", kb, e)] if kb >= 2 * nu else []) + ([("cvt", kb, e - 1)] if e & 1 else [])
            for key in keys:
                if key in wrap: continue
                if key[0] == "exp":
                    cur = ps.put_va(max(cur, rdy), mk(key, 1), cost=2); pl2[key] = cur
                else:
                    pl2[key] = ps.put_va(pl2[("exp", kb, e)] + 1, mk(key, 1))
    for key, g in pl2.items():
        kb, e = key[1], key[2]
        if kb + 2 < 8: assert g < GP(kb + 2, 4 * (e >> 2)), (key, g)
    for k, m in enumerate(mf):
        e1.e(m)
        for g, it in ps.gap(k): e1.e(it)
    e1.e("s_nop 4")
    tl = [i for i in ps.tail if i.kind == "trans"] + [I("s_nop 0")] + [i for i in ps.tail if i.kind != "trans"]
    for it in tl: e1.e(it)
    e1.e(mk(("waitk", 8), 1))
    stamp(e1, 2, 5, vt=244)

    b0 = Seq(); b0.e("F_LOOP:"); b0.extend(body(0)); b0.e("s_cbranch_scc1 F_EPI")
    b1 = body(1); b1.e("s_branch F_LOOP")

    OD0 = SR
    XSV = SR + 4
    OD, WOA = 196, 200
    def slot_m0(sl):
        if sl < 6: return I(f"s_add_u32 m0, s{S_W24}, {sl * 4096}")
        return m0_set(LD + ((sl - 6) >> 1) * SLOT + (sl & 1) * 4096)
    def wo_dma(kap, sl, od):
        return ([I(f"s_mov_b32 s43, {kap * 32768}"), slot_m0(sl)],
                [I(f"buffer_load_dwordx4 v{od+k}, {s(SRD_W,4)}, s43 offen offset:{k*1024} lds") for k in range(4)])
    ep = Seq()
    ep.e("F_EPI:")
    mf = [sum_mfma(1, qt, u) for qt in range(4) for u in range(nu)]
    ns = len(mf)
    mf += [pv_mfma(1, db, qt, u) for db in range(8) for qt in range(4) for u in range(4)]
    es = Sched(len(mf), cap=2)
    GE = lambda db, g: ns + 16 * db + g
    pre = Seq()
    wl = sorted(wrap, key=lambda k: place[k])
    for key in wl:
        if key[0] == "vr": pre.e(mk(key, 0))
    for key in wl:
        if key[0] == "exp": pre.e(mk(key, 0))
    pre.e(f"s_add_u32 s{SRD_W}, s{A_WO}, s{S_WOOFF}")
    pre.e(f"s_addc_u32 s{SRD_W+1}, s{A_WO+1}, 0")
    pre.e(f"s_sub_u32 s{SRD_W+2}, {4*MB}, s{S_WOOFF}")
    for key in wl:
        if key[0] == "cvt": pre.e(mk(key, 0))
    for key in wl:
        if key[0] == "add": pre.e(mk(key, 0))
    pre.e("s_waitcnt lgkmcnt(0)")
    for db in range(7):
        rs = []
        for u in range(4):
            for x in range(2):
                i = v_read(1, db + 1, u, x); rs.append(i)
                es.put_mem(GE(db, 1 + 2 * u), i)
        es.put_sc(GE(db, 14), wait(lg=rs), exact=True)
    ch = Chain(es, 0)
    ch.put(f"v_lshrrev_b32 v{OD0+1}, 8, v{VL16}")
    ch.put(f"v_and_b32 v{OD0}, 0x70, v{VL16}")
    ch.put(f"v_lshlrev_b32 v{OD0+1}, 5, v{OD0+1}")
    ch.put(f"v_lshrrev_b32 v{OD0+2}, 7, v{VL16}")
    ch.put(f"v_xor_b32 v{OD0}, v{OD0}, v{OD0+1}")
    ch.put(f"v_lshl_add_u32 v{OD0}, v{OD0+2}, 10, v{OD0}")
    for k in range(1, 4): ch.put(f"v_add_u32 v{OD0+k}, {k*7168}, v{OD0}")
    wod = {}
    for kap in range(6):
        sc_, dm = wo_dma(kap, kap, OD0)
        ch.put(sc_)
        for k, i_ in enumerate(dm): ch.put(i_, gap=1 if k == 0 else 0)
        wod[kap] = dm
    xsl = ch.put(f"buffer_load_dwordx4 {v(XSV,4)}, v{VL16}, {s(SRD_L,4)}, s{S_IDXO} offen sc1")
    RL = WF; TT = WF + 4
    g = 0
    def fin(text, gap=0):
        nonlocal g
        g = es.put_va(g + gap, I(text), cost=2 if "rcp" in text else 1)
    for qt in range(4): fin(f"v_add_f32 v{RL+qt}, v{LV+2*qt}, v{LV+2*qt+1}")
    for sw in ("v_permlane16_swap_b32", "v_permlane32_swap_b32"):
        for qt in range(4): fin(f"v_mov_b32 v{TT+qt}, v{RL+qt}")
        for qt in range(4): fin(f"{sw} v{RL+qt}, v{TT+qt}", gap=1 if qt == 0 else 0)
        for qt in range(4): fin(f"v_add_f32 v{RL+qt}, v{RL+qt}, v{TT+qt}")
    g = max(g, ns + 4)
    if nu:
        for qt in range(4): fin(f"v_add_f32 v{RL+qt}, v{RL+qt}, v{LM+4*qt}")
    es.put_sc(0, I("s_mov_b32 s42, 0x4e800000"))
    for qt in range(4): fin(f"v_cmp_nle_f32 s[{52+2*qt}:{53+2*qt}], v{RL+qt}, s42")
    for qt in range(4): fin(f"v_rcp_f32 v{RL+qt}, v{RL+qt}")
    g2 = g + 1
    g2 = es.put_sc(g2, I("s_or_b64 s[52:53], s[52:53], s[54:55]")) + 1
    g2 = es.put_sc(g2, I("s_or_b64 s[56:57], s[56:57], s[58:59]")) + 1
    g2 = es.put_sc(g2, I("s_or_b64 s[52:53], s[52:53], s[56:57]")) + 1
    g2 = es.put_sc(g2, I("s_or_b32 s52, s52, s53")) + 1
    g2 = es.put_sc(g2, I(f"s_lshl_b32 s53, s{S_W}, 2")) + 1
    g2 = es.put_sc(g2, I(f"s_add_u32 s53, s53, {LDS_FLAG}")) + 1
    g2 = es.put_va(g2, I(f"v_mov_b32 v{TT}, s52"))
    g2 = es.put_va(g2, I(f"v_mov_b32 v{TT+1}, s53"))
    g2 = es.put_va(g2, I(f"v_mov_b32 v{TT+2}, {LDS_FLAG}")) + 1
    fw = I(f"ds_write_b32 v{TT+1}, v{TT}")
    g2 = es.put_mem(g2, fw, exact=False) + 4
    g2 = es.put_sc(g2, wait(lg=[fw])) + 1
    g2 = es.put_sc(g2, I("s_barrier")) + 1
    FL = WF + 8
    fr = I(f"ds_read_b128 {v(FL,4)}, v{TT+2}")
    g2 = es.put_mem(g2, fr, exact=False)
    for qt in range(4): es.put_sc(2 + qt, I(f"s_mov_b32 s{S_Q+qt}, {qt*131072}"))
    gn = g + 2
    grp = 0
    ost = []
    pairs = []
    for s_ in range(4):
        for qt in range(4):
            st_ = (grp % 5) * 12; grp += 1
            rdy = GE(2 * s_ + 1, 4 * qt + 3 + 5)
            gn = max(gn, rdy)
            for x in range(2):
                for r in range(4):
                    gn = es.put_va(gn, I(f"v_accvgpr_read_b32 v{st_+4+4*x+r}, {a(Oreg(2*s_+x, qt)+r)}"))
            ml = [I(f"v_mul_f32 v{st_+4+k}, v{st_+4+k}, v{RL+qt}") for k in range(8)]
            for k in range(8): gn = es.put_va(gn, ml[k])
            for k in range(0, 8, 2):
                sel = "op_sel:[0,0] op_sel_hi:[1,0]" if qt % 2 == 0 else "op_sel:[0,1] op_sel_hi:[1,1]"
                pairs.append((ml[k], ml[k + 1], f"v_pk_mul_f32 {v(st_+4+k,2)}, {v(st_+4+k,2)}, {v(RL+(qt&2),2)} {sel}"))
            for k in range(4):
                gn = es.put_va(gn, I(f"v_cvt_pk_bf16_f32 v{st_+k}, v{st_+4+2*k}, v{st_+5+2*k}"))
            stn = I(f"buffer_store_dwordx4 {v(st_,4)}, v{VL16}, {s(SRD_O,4)}, s{S_Q+qt} offen offset:{s_*1024} sc1")
            ost.append(stn)
            es.put_mem(gn + 1, stn, cost=2, exact=False)
    stamp(ep, 2, 6, vt=244)
    ep.extend(pre)
    for k, m in enumerate(mf):
        ep.e(m)
        for g_, it in es.gap(k): ep.e(it)
    tl = Seq()
    intail = {id(x) for x in es.tail}
    rep = {}
    for m0_, m1_, tx in pairs:
        if id(m0_) in intail and id(m1_) in intail: rep[id(m0_)] = tx; rep[id(m1_)] = None
    for it in es.tail:
        if id(it) in rep:
            if rep[id(it)]: tl.e(rep[id(it)])
        else: tl.e(it)
    autonop(tl, ep)
    etail = len(tl)
    ep.extend(tl)
    stamp(ep, 2, 7, vt=244)
    ck = Seq()
    ck.e("s_waitcnt lgkmcnt(0)")
    ck.e(f"v_or3_b32 v{FL}, v{FL}, v{FL+1}, v{FL+2}")
    ck.e(f"v_or_b32 v{FL}, v{FL}, v{FL+3}")
    VL = 195; EA = 193; VY = 194
    ck.e(f"v_lshrrev_b32 v60, 6, v{VL16}")
    ck.e(f"v_readfirstlane_b32 s52, v{FL}")
    ck.e(f"v_bfe_u32 v61, v{VL16}, 7, 2")
    ck.e(f"v_bfe_u32 v62, v{VL16}, 4, 2")
    ck.e("v_lshlrev_b32 v60, 7, v60")
    ck.e("v_lshl_add_u32 v60, v61, 5, v60")
    ck.e("v_lshl_add_u32 v60, v62, 3, v60")
    ck.e(f"s_andn2_b32 s52, s52, s{S_FB}")
    ck.e("s_cmp_lg_u32 s52, 0")
    ck.e("s_cbranch_scc1 F_FB")
    autonop(ck, ep)
    ep.extend(ck)

    sm = Seq()
    sm.e(f"v_add_u32 v{WOA}, s{S_W24}, v60")
    sm.e(f"s_add_u32 s42, s{S_WB}, {LD}")
    for nt in range(1, 4): sm.e(f"v_xor_b32 v{WOA+nt}, {nt << 5}, v{WOA}")
    def woreg(kap):
        if kap < 6: return 128 + 16 * kap
        if kap < 14: return 16 * (kap - 6)
        if kap < 16: return 224 + 16 * (kap - 14)
        j = kap - 26
        return 144 + 16 * j if j < 5 else 0
    def wo_reads(sl, dst):
        out = []
        for nt in range(4):
            for x in range(2):
                base, off = (WOA + nt, sl * 4096) if sl < 6 else (WOA + 4 + nt, ((sl - 6) >> 1) * SLOT + (sl & 1) * 4096)
                out.append(I(f"ds_read_b64_tr_b16 {rng(dst[0], dst[1] + 4*nt + 2*x, 2)}, v{base} offset:{off + x*2048}"))
        return out
    def lin_dma(z, kap, sl):
        sc_, dm = wo_dma(kap, sl, OD)
        z.e(sc_); z.e("s_nop 0")
        for i_ in dm: z.e(i_)
        wod[kap] = dm
    def roll(z, items, extra=None):
        prev = None
        for n_, (kap, sl, ref) in enumerate(items):
            z.e(wait(vm=wod[kap]))
            rd = wo_reads(sl, ("a", woreg(kap)))
            for i_ in rd[:7]: z.e(i_)
            if prev:
                z.e(wait(lg=prev[0]))
            z.e(rd[7])
            if prev and prev[2] is not None: lin_dma(z, prev[2], prev[1])
            if extra and n_ in extra: z.e(extra[n_])
            prev = (rd, sl, ref)
        z.e(wait(lg=prev[0]))
        if prev[2] is not None: lin_dma(z, prev[2], prev[1])
    ex = {0: [I(f"v_mov_b32 v{OD+k}, v{OD0+k}") for k in range(4)]
             + [I(f"v_add_u32 v{WOA+4}, s42, v60"), I(f"v_mov_b32 v{VL}, v{VL16}")]
             + [I(f"v_xor_b32 v{WOA+4+nt}, {nt << 5}, v{WOA+4}") for nt in range(1, 4)]}
    roll(sm, [(k, k, k + 6) for k in range(6)], ex)
    sm.e(f"s_lshl_b32 s59, s{S_QBLK}, 8")
    sm.e(f"s_lshl_b32 s54, s{S_H}, 2")
    sm.e("s_add_u32 s59, s59, s54")
    sm.e(f"s_add_u32 s59, s59, {WS_ATT}")
    sm.e(wait(vm=ost))
    sm.e("s_barrier")
    sm.e(masked(f"s[{M_W0L0}:{M_W0L0+1}]", I(f"buffer_store_dword v{ONES}, off, {s(SRD_L,4)}, s59 sc1")))
    stamp(sm, 2, 8, vt=140)
    lin_dma(sm, 12, 6)
    lin_dma(sm, 13, 7)
    XP, XNP = 208, 216
    S_XOFF = S_XO0
    sm.e(f"v_and_b32 v61, 0xf0, v{VL}")
    sm.e(f"v_lshrrev_b32 v62, 8, v{VL}")
    sm.e("v_lshlrev_b32 v61, 6, v61")
    sm.e(f"v_lshl_add_u32 v{EA}, v62, 5, v61")
    sm.e(f"s_lshl_b32 s54, s{S_QB}, 2")
    sm.e(f"s_add_u32 s54, s54, s{S_W}")
    sm.e("s_lshl_b32 s54, s54, 14")
    sm.e(f"s_lshl_b32 s55, s{S_QBLK}, 7")
    sm.e(f"s_add_u32 s{S_XOFF}, s54, s55")
    srd(sm, 52, A_X, 2 * MB)
    lx = [sm.e(f"buffer_load_dwordx4 {v(XP,4)}, v{EA}, s[52:55], s{S_XOFF} offen"),
          sm.e(f"buffer_load_dwordx4 {v(XP+4,4)}, v{EA}, s[52:55], s{S_XOFF} offen offset:16"),
          sm.e(f"buffer_load_dwordx4 {v(XNP,4)}, v{EA}, {s(SRD_L,4)}, s{S_XOFF} offen sc1"),
          sm.e(f"buffer_load_dwordx4 {v(XNP+4,4)}, v{EA}, {s(SRD_L,4)}, s{S_XOFF} offen offset:16 sc1")]
    FA, FB_, FD, FW = 140, 141, 142, 143
    DW = 144
    HD = 136
    sm.e(f"s_lshl_b32 s42, s{S_W}, 10")
    sm.e(f"s_add_u32 s42, s42, {XS_IMG}")
    sm.e(f"v_add_u32 v{FW}, s42, v{VL}")
    sm.e(f"v_lshl_add_u32 v{FB_}, v62, 4, s42")
    sm.e(f"ds_write_b128 v{FW}, {v(XSV,4)}")
    sm.e(f"v_bfe_u32 v60, v{VL}, 6, 2")
    sm.e("v_lshl_add_u32 v60, v62, 3, v60")
    sm.e(f"v_bfe_u32 v61, v{VL}, 4, 1")
    sm.e(f"v_bfe_u32 v63, v{VL}, 5, 1")
    sm.e("v_lshlrev_b32 v60, 4, v60")
    sm.e("v_lshl_add_u32 v60, v61, 3, v60")
    sm.e(f"v_mul_u32_u24 v63, {U_IMG - G_IMG}, v63")
    sm.e(f"s_mov_b32 s43, {G_IMG}")
    sm.e(f"v_add3_u32 v{FA}, v60, v63, s43")
    sm.e(f"s_lshl_b32 s42, s{S_W}, 8")
    sm.e(f"s_add_u32 s42, s42, {D_IMG}")
    sm.e(f"v_lshrrev_b32 v{FD}, 2, v{VL}")
    sm.e(f"v_add_u32 v{FD}, s42, v{FD}")
    frd = {}
    def ffn_rd(ks):
        frd[ks] = [sm.e(f"ds_read_b64_tr_b16 {v(4*ks,2)}, v{FA} offset:{ks*512}"),
                   sm.e(f"ds_read_b64_tr_b16 {v(4*ks+2,2)}, v{FA} offset:{ks*512+64}"),
                   sm.e(f"ds_read_b128 {v(64+4*ks,4)}, v{FB_} offset:{ks*64}")]
    for ks in range(4): ffn_rd(ks)
    dwr = []
    for ks in range(16):
        sm.e(wait(lg=frd[ks]))
        sm.e(f"{MF} {v(HD,4)}, {v(4*ks,4)}, {v(64+4*ks,4)}, {v(HD,4) if ks else 0}")
        if ks + 4 < 16: ffn_rd(ks + 4)
        else:
            for j in range(2 * (ks - 12), 2 * (ks - 12) + 2):
                dwr.append(sm.e(f"ds_read_b32 v{DW+j}, v{FD} offset:{j*1024}"))
    ff = Seq()
    HU = 152; HT = 156
    ff.e(f"v_cvt_pk_bf16_f32 v{HT}, v{HD}, v{HD+1}")
    ff.e(f"v_cvt_pk_bf16_f32 v{HT+1}, v{HD+2}, v{HD+3}")
    ff.e(f"v_mov_b32 v{HT+2}, v{HT}")
    ff.e(f"v_mov_b32 v{HT+3}, v{HT+1}")
    ff.e(f"v_permlane32_swap_b32 v{HT}, v{HT+2}")
    ff.e(f"v_permlane32_swap_b32 v{HT+1}, v{HT+3}")
    unpack(ff, HD, HT, 2)
    unpack(ff, HU, HT + 2, 2)
    ff.extend(silu_list(HD, HD, HT, 4))
    for e in range(4): ff.e(f"v_mul_f32 v{HD+e}, v{HD+e}, v{HU+e}")
    ff.e(f"v_cvt_pk_bf16_f32 v{HT}, v{HD}, v{HD+1}")
    ff.e(f"v_cvt_pk_bf16_f32 v{HT+1}, v{HD+2}, v{HD+3}")
    unpack(ff, HD, HT, 2)
    for j in range(8): ff.e(f"v_readlane_b32 s{52+j}, v{HD+(j&3)}, {16*(j>>2)}")
    ff.e(wait(lg=dwr))
    unpack(ff, 160, DW, 8)
    for j in range(8):
        for e in range(2):
            if j == 0: ff.e(f"v_mul_f32 v{176+e}, s52, v{160+e}")
            else: ff.e(f"v_fmac_f32 v{176+e}, s{52+j}, v{160+2*j+e}")
    ff.e(f"v_lshrrev_b32 v{FD}, 1, v{VL}")
    ff.e("s_lshl_b32 s42, s2, 11")
    ff.e(f"s_lshl_b32 s43, s{S_W}, 9")
    ff.e("s_add_u32 s42, s42, s43")
    ff.e(f"s_add_u32 s42, s42, {WS_YP}")
    yst = ff.e(f"buffer_store_dwordx2 v[176:177], v{FD}, {s(SRD_L,4)}, s42 offen sc1")
    autonop(ff, sm)
    sm.extend(ff)
    stamp(sm, 2, 9, vt=140)
    roll(sm, [(6 + k, k, 14 + k) for k in range(8)])
    sm.e(f"s_add_u32 s55, s2, {WS_FF}")
    sm.e(wait(vm=[yst]))
    sm.e("s_barrier")
    sm.e(masked(f"s[{M_W0L0}:{M_W0L0+1}]", I(f"buffer_store_byte v{ONES}, off, {s(SRD_L,4)}, s55 sc1")))
    lin_dma(sm, 22, 8)
    lin_dma(sm, 23, 9)
    S_ATT = S_XO1
    sm.e(f"s_and_b32 s{S_ATT}, s2, 7")
    sm.e(f"s_lshl_b32 s{S_ATT}, s{S_ATT}, 8")
    sm.e(f"s_add_u32 s{S_ATT}, s{S_ATT}, {WS_ATT}")
    sm.e(f"v_lshrrev_b32 v{VY}, 2, v{VL}")
    VP2 = 60
    poll2 = I(f"buffer_load_dword v{VP2}, v{VY}, {s(SRD_L,4)}, s{S_ATT} offen sc1")
    sm.e(masked(f"s[{M_W0}:{M_W0+1}]", poll2))
    roll(sm, [(14, 0, 24), (15, 1, 25)])
    sm.e(f"s_lshl_b32 s54, s{S_QB}, 19")
    sm.e(f"s_lshl_b32 s55, s{S_W}, 15")
    sm.e("s_add_u32 s54, s54, s55")
    sm.e(f"s_add_u32 s54, s54, {WS_OF}")
    srd(sm, SRD_X, 4, 3 * 131072 + 32768, off="s54")
    srd(sm, 56, A_OUT, 2 * MB)
    srd(sm, 52, 4, 0, off=WS_FF)
    sm.e(f"s_lshr_b32 s42, s{S_IDXO}, 16")
    sm.e(f"s_cmp_eq_u32 s42, s{S_QB}")
    sm.e(f"s_cselect_b32 s54, {1024 + NFF * 2048}, 0")
    M_FF = A_WG
    sm.e(f"s_cselect_b32 s{M_FF}, 0, -1")
    sm.e(f"s_cselect_b32 s{M_FF+1}, {hex((0xffffffff << 11) & 0xffffffff)}, -1")
    GORD = list(range(16, 26)) + list(range(16)) + list(range(26, 32))
    LSLOT = {16: 2, 17: 3, 18: 4, 19: 5, 20: 6, 21: 7, 22: 8, 23: 9, 24: 0, 25: 1,
             26: 2, 27: 3, 28: 4, 29: 5, 30: 6, 31: 7}
    ACC, RING = 0, 64
    sm.e(wait(vm=wod[16]))
    for i_ in wo_reads(LSLOT[16], ("v", WF)): sm.e(i_)
    sm.e(wait(vm=[poll2]))
    sm.e(f"v_cmp_ne_u32 vcc, 0, v{VP2}")
    sm.e("s_nop 3")
    sm.e(f"s_or_b32 s42, vcc_lo, s{M_NW0}")
    sm.e("s_cmp_eq_u32 s42, -1")
    sm.e("s_cbranch_scc0 F_SPIN2")
    sm.e("F_BACK2:")
    sm.e("s_barrier")
    stamp(sm, 2, 10, vt=40)
    autonop(sm, ep)

    gm = Seq()
    def of_load(i, qt):
        kap = GORD[i]
        return I(f"buffer_load_dwordx4 {v(RING + 16*(i % depth) + 4*qt, 4)}, v{VL}, {s(SRD_X,4)}, s{S_Q+qt} offen offset:{(kap&3)*1024} sc1")
    def of_soff(i, qt): return I(f"s_mov_b32 s{S_Q+qt}, {qt*131072 + (GORD[i] >> 2)*4096}")
    def newgrp(i): return i == 0 or (GORD[i] >> 2) != (GORD[i - 1] >> 2)
    ofl = {}
    for i in range(depth):
        for qt in range(4):
            if newgrp(i): gm.e(of_soff(i, qt))
            ofl[(i, qt)] = gm.e(of_load(i, qt))
    mf = []
    for i in range(32):
        kap = GORD[i]
        for qt in range(4):
            for nt_ in range(4):
                nt = nt_ if qt % 2 == 0 else 3 - nt_
                A_ = v(WF + 16 * (i & 1) + 4 * nt, 4) if i < 10 else a(woreg(kap) + 4 * nt, 4)
                ac = v(ACC + 16 * qt + 4 * nt, 4)
                mf.append(I(f"{MF} {ac}, {A_}, {v(RING + 16*(i % depth) + 4*qt, 4)}, {ac if i else 0}"))
    gs = Sched(512)
    for i in range(32):
        for qt in range(4):
            gq = 16 * i + 4 * qt
            if i + depth < 32:
                ofl[(i + depth, qt)] = of_load(i + depth, qt)
    for i in range(32):
        for qt in range(4):
            gq = 16 * i + 4 * qt
            if gq: gs.put_sc(gq - 1, wait(vm=[ofl[(i, qt)]]), exact=True)
            if i + depth < 32:
                if newgrp(i + depth): gs.put_sc(gq + 1, of_soff(i + depth, qt), exact=True)
                gs.put_mem(gq + 3, ofl[(i + depth, qt)], cost=2)
    for i in range(9):
        kap = GORD[i + 1]
        gs.put_sc(16 * i, wait(vm=wod[kap]), exact=True)
        rd = wo_reads(LSLOT[kap], ("v", WF + 16 * ((i + 1) & 1)))
        for k, i_ in enumerate(rd): gs.put_mem(16 * i + (2, 4, 6, 8)[k >> 1], i_)
        gs.put_sc(16 * i + 14, wait(lg=rd), exact=True)
    ch = Chain(gs, 16 * stream_at)
    for kap in range(26, 32):
        ch.g = max(ch.g, 16 * (kap - 26))
        sc_, dm = wo_dma(kap, LSLOT[kap], OD)
        ch.put(sc_)
        for k, i_ in enumerate(dm): ch.put(i_, gap=1 if k == 0 else 0)
        wod[kap] = dm
    ch = Chain(gs, 16 * 16)
    prev = None
    for kap in range(26, 32):
        ch.g = max(ch.g, 16 * (10 + (kap - 25)) + 16 + 2)
        ch.put(wait(vm=wod[kap]))
        if prev: ch.put(wait(lg=prev))
        prev = wo_reads(LSLOT[kap], ("a", woreg(kap)))
        for i_ in prev: ch.put(i_)
    gdrain = ch.g
    lastdrain = prev
    ch = Chain(gs, 16 * 6 + 5)
    poll3 = I(f"buffer_load_dword v{VY}, v{VY}, s[52:55], 0 offen sc1")
    ch.put(poll3)
    RS = OD
    ch.g = max(ch.g, 16 * 9 + 2)
    ch.put(wait(vm=[poll3]))
    ch.put(f"v_cmp_eq_u32 vcc, {hex(FLAGV)}, v{VY}")
    ch.put([I(f"s_or_b64 s[42:43], vcc, s[{M_FF}:{M_FF+1}]"), I("s_cmp_eq_u64 s[42:43], -1"),
            I("s_cbranch_scc0 F_SPIN3"), I("F_BACK3:")])
    ch.put(f"v_and_b32 v{VY}, 0xf0, v{VL}")
    ch.put(f"v_lshrrev_b32 v{RS+1}, 8, v{VL}")
    ch.put(f"v_lshl_add_u32 v{VY}, v{RS+1}, 11, v{VY}")
    ch.put([I(f"s_mul_i32 s42, s{S_W}, {44*2048}"), I(f"s_lshl_b32 s{S_T}, s{S_QBLK}, 8"), I(f"s_add_u32 s42, s42, s{S_T}"),
            I("s_add_u32 s42, s42, 1024")])
    ch.g = max(ch.g, 16 * 10 + 1)
    yl = []
    for k in range(11):
        if k == 8: ch.g = max(ch.g, 16 * 11 + 1)
        dst = v(WF + 4 * k, 4) if k < 8 else a(128 + 4 * (k - 8), 4)
        yl.append(ch.put(f"buffer_load_dwordx4 {dst}, v{VY}, s[52:55], s42 offen sc1"))
        if k < 10: ch.put("s_add_u32 s42, s42, 8192")
    ch.put([I(f"s_and_b32 s42, s{S_KEY}, 0xffff0000"), I("s_xor_b32 s43, s42, 0x80000000"),
            I(f"s_xor_b32 s{S_T}, s42, 0xffff0000"), I("s_bitcmp1_b32 s42, 31"), I(f"s_cselect_b32 s42, s43, s{S_T}")])
    ch.put(f"v_mov_b32 v{RS}, s42")
    ch.put(f"v_mul_f32 v{RS}, s{S_NL2E}, v{RS}")
    ch.put(f"v_exp_f32 v{RS}, v{RS}")
    ch.put(f"v_add_f32 v{RS}, 1.0, v{RS}")
    ch.put(f"v_rcp_f32 v{RS}, v{RS}")
    ch.put(f"v_cvt_pk_bf16_f32 v{RS}, v{RS}, v{RS}")
    ch.put(f"v_lshlrev_b32 v{RS}, 16, v{RS}")
    ch.put(f"s_add_u32 s42, s{S_WB}, {LE}")
    ch.put(f"v_add_u32 v{RS+2}, s42, v{VL}")
    ch.put(f"v_lshrrev_b32 v{RS+3}, 2, v{VL}")
    ch.put(f"v_add_u32 v{RS+3}, {LE}, v{RS+3}")
    ch.g = max(ch.g, 16 * 15)
    ch.put(wait(vm=yl[:8]))
    for k in range(1, 8):
        for e in range(4): ch.put(f"v_add_f32 v{WF+e}, v{WF+e}, v{WF+4*k+e}")
    ch.put(wait(vm=yl))
    for k in range(12): ch.put(f"v_accvgpr_read_b32 v{WF+4+k}, {a(128+k)}")
    for k in range(1, 4):
        for e in range(4): ch.put(f"v_add_f32 v{WF+e}, v{WF+e}, v{WF+4*k+e}")
    for sw in ("v_permlane16_swap_b32", "v_permlane32_swap_b32"):
        for e in range(4): ch.put(f"v_mov_b32 v{WF+4+e}, v{WF+e}")
        for e in range(4): ch.put(f"{sw} v{WF+e}, v{WF+4+e}")
        for e in range(4): ch.put(f"v_add_f32 v{WF+e}, v{WF+e}, v{WF+4+e}")
    yw = ch.put(f"ds_write_b128 v{RS+2}, {v(WF,4)}")
    ch.g = max(ch.g, gdrain) + 3
    ch.put(wait(lgn=0))
    ch.put("s_barrier", gap=1)
    gbar = ch.g
    yr = [ch.put(f"ds_read_b32 v{WF+k}, v{RS+3} offset:{k*8192}") for k in range(4)]
    ch.put(f"v_add_u32 v{RS+3}, s{S_WB}, v{RS+3}")
    ch.put(f"v_mov_b32 v{WF+4}, 0")
    ch.put([I(f"s_bfe_u32 s42, s{S_IDXO}, 0x6000a"), I(f"s_lshl_b32 s43, s{S_W}, 4"), I("s_sub_u32 s42, s42, s43"),
            I(f"s_add_u32 s43, s{S_WB}, {LE + 1024}")])
    ch.put(f"v_bfe_u32 v{WF+5}, v{VL}, 4, 4")
    ch.put(f"v_cmp_eq_u32 vcc, s42, v{WF+5}")
    ch.put(f"v_lshlrev_b32 v{RS+1}, 6, v{RS+1}")
    ch.put(f"v_mov_b32 v{WF+5}, 0x100")
    ch.put(f"v_cndmask_b32 v{RS+1}, v{WF+5}, v{RS+1}, vcc")
    ch.put(f"v_add_u32 v{RS+1}, s43, v{RS+1}")
    ch.put(wait(lg=yr))
    ch.put(f"v_add_f32 v{WF}, v{WF}, v{WF+1}")
    ch.put(f"v_add_f32 v{WF+2}, v{WF+2}, v{WF+3}")
    ch.put(f"v_add_f32 v{WF}, v{WF}, v{WF+2}")
    ch.put(f"v_cvt_pk_bf16_f32 v{WF}, v{WF}, v{WF}")
    ch.put(f"v_lshlrev_b32 v{WF}, 16, v{WF}")
    ch.put(f"v_mul_f32 v{WF}, v{WF}, v{RS}")
    ch.put(f"v_cvt_pk_bf16_f32 v{WF}, v{WF}, v{WF}")
    ch.put(f"v_lshlrev_b32 v{WF}, 16, v{WF}")
    y1 = ch.put(f"ds_write_b32 v{RS+3}, v{WF} offset:1024")
    y2 = ch.put(f"ds_write_b32 v{RS+3}, v{WF+4} offset:1280")
    Z, TZ = WF, WF + 16
    ch.put(wait(lg=[y1, y2]), gap=2)
    zr = [ch.put(f"ds_read_b128 {v(Z+4*k,4)}, v{RS+1} offset:{16*k}") for k in range(4)]
    ch.put(wait(vm=lx))
    zz = Seq(); unpack(zz, TZ, XNP, 8)
    for i_ in zz: ch.put(i_)
    ch.put(wait(lg=zr))
    for e in range(16): ch.put(f"v_add_f32 v{Z+e}, v{Z+e}, v{TZ+e}")
    for e in range(8): ch.put(f"v_cvt_pk_bf16_f32 v{TZ+e}, v{Z+2*e}, v{Z+2*e+1}")
    zz = Seq(); unpack(zz, Z, TZ, 8)
    for i_ in zz: ch.put(i_)
    for i_ in silu_list(Z, Z, TZ, 16): ch.put(i_)
    zz = Seq(); unpack(zz, TZ, XP, 8)
    for i_ in zz: ch.put(i_)
    ch.put(f"v_add_u32 v{RS}, s{S_WB4}, v{VL}")
    ch.put(f"s_lshl_b32 s42, s{S_W}, 14")
    ch.put(f"v_and_b32 v{RS+1}, 0xf0, v{VL}")
    ch.put(f"v_lshrrev_b32 v{RS+2}, 8, v{VL}")
    ch.put(f"v_lshl_add_u32 v{RS+1}, v{RS+2}, 10, v{RS+1}")
    ch.put(f"v_add_u32 v{RS+1}, s42, v{RS+1}")
    gend = ch.g
    gm.e(wait(vm=[ofl[(0, 0)]], lgn=0))
    stamp(gm, 2, 11, vt=40)
    for k, m in enumerate(mf):
        gm.e(m)
        for g_, it in gs.gap(k): gm.e(it)
    tl = Seq()
    for it in gs.tail: tl.e(it)
    gtail = len(tl)
    stamp(tl, 2, 12, vt=RING)
    for qt in range(4):
        for nt in range(4):
            tl.e(f"ds_write_b128 v{RS}, {v(ACC+16*qt+4*nt,4)} offset:{qt*16384+nt*1024}")
        if qt == 2: tl.e("s_waitcnt lgkmcnt(4)")
    tl.e("s_waitcnt lgkmcnt(0)")
    tl.e("s_barrier")
    rr = {}
    for sw in range(4):
        rr[sw] = [tl.e(f"ds_read_b128 {v(RING+16*sw+4*k,4)}, v{RS+1} offset:{sw*4096+k*256}") for k in range(4)]
        if sw == 2: tl.e(wait(lg=rr[0]))
    tl.e(wait(lg=rr[1]))
    for e in range(0, 16, 2): tl.e(f"v_pk_add_f32 {v(RING+e,2)}, {v(RING+e,2)}, {v(RING+16+e,2)}")
    tl.e(wait(lg=rr[3]))
    for e in range(0, 16, 2): tl.e(f"v_pk_add_f32 {v(RING+32+e,2)}, {v(RING+32+e,2)}, {v(RING+48+e,2)}")
    for e in range(0, 16, 2): tl.e(f"v_pk_add_f32 {v(RING+e,2)}, {v(RING+e,2)}, {v(RING+32+e,2)}")
    for e in range(8): tl.e(f"v_cvt_pk_bf16_f32 v{RING+16+e}, v{RING+2*e}, v{RING+2*e+1}")
    unpack(tl, RING, RING + 16, 8)
    for e in range(0, 16, 2): tl.e(f"v_pk_mul_f32 {v(RING+e,2)}, {v(RING+e,2)}, {v(Z+e,2)}")
    for e in range(8): tl.e(f"v_cvt_pk_bf16_f32 v{RING+16+e}, v{RING+2*e}, v{RING+2*e+1}")
    unpack(tl, RING, RING + 16, 8)
    for e in range(0, 16, 2): tl.e(f"v_pk_add_f32 {v(RING+e,2)}, {v(RING+e,2)}, {v(TZ+e,2)}")
    for e in range(8): tl.e(f"v_cvt_pk_bf16_f32 v{RING+16+e}, v{RING+2*e}, v{RING+2*e+1}")
    tl.e(f"buffer_store_dwordx4 {v(RING+16,4)}, v{EA}, s[56:59], s{S_XOFF} offen")
    tl.e(f"buffer_store_dwordx4 {v(RING+20,4)}, v{EA}, s[56:59], s{S_XOFF} offen offset:16")
    if STAMP["on"]:
        tl.e("s_waitcnt vmcnt(0)")
        stamp(tl, 2, 13, vt=40)
        tl.e(f"v_mov_b32 v40, s{S_SPIN}")
        tl.e(f"v_mov_b32 v41, 1")
        tl.e(masked(f"s[{M_W0L0}:{M_W0L0+1}]", I(f"buffer_store_dwordx2 v[40:41], v42, s[92:95], s96 offen offset:16")))
    tl.e("F_END:")
    tl.e("s_endpgm")
    autonop(tl, gm)
    gm.extend(tl)

    def spin(n, pre_, ld, cmp_, test, mask=None, unit=1):
        z = Seq()
        z.e(f"F_SPIN{n}:")
        z.e(f"s_mov_b32 s{S_T}, {SPIN_LIMIT}")
        z.e(f"F_SPINL{n}:")
        z.e(pre_)
        z.e(ld)
        z.e(f"s_add_u32 s{S_SPIN}, s{S_SPIN}, {unit}")
        z.e("s_waitcnt vmcnt(0)")
        z.e(cmp_)
        z.e("s_nop 3")
        z.e(test)
        z.e(f"s_cbranch_scc1 F_BACK{n}")
        z.e(f"s_sub_u32 s{S_T}, s{S_T}, 1")
        z.e(f"s_cmp_lg_u32 s{S_T}, 0")
        z.e(f"s_cbranch_scc1 F_SPINL{n}")
        z.e(f"s_branch F_BACK{n}")
        return z
    sp1 = spin(1, [f"v_lshrrev_b32 v{VPOLL}, 2, v{VL16}"], f"buffer_load_dword v{VPOLL}, v{VPOLL}, {s(SRD_D,4)}, 0 offen sc1",
               f"v_cmp_eq_u32 vcc, {hex(FLAGV)}, v{VPOLL}", ["s_cmp_eq_u64 vcc, -1"], unit=1)
    sp2 = spin(2, [], f"buffer_load_dword v{VP2}, v{VY}, {s(SRD_L,4)}, s{S_ATT} offen sc1",
               f"v_cmp_ne_u32 vcc, 0, v{VP2}", ["s_cmp_eq_u32 vcc_lo, -1"], unit=1 << 8)
    sp3 = spin(3, [f"v_lshrrev_b32 v{VY}, 2, v{VL}"], f"buffer_load_dword v{VY}, v{VY}, s[52:55], 0 offen sc1",
               f"v_cmp_eq_u32 vcc, {hex(FLAGV)}, v{VY}",
               [f"s_or_b64 s[42:43], vcc, s[{M_FF}:{M_FF+1}]", "s_cmp_eq_u64 s[42:43], -1"], unit=1 << 20)

    fb = Seq()
    fb.e("F_FB:")
    fb.e(f"s_mov_b32 s{S_FB}, -1")
    fb.e("s_waitcnt vmcnt(0)")
    for r in range(16): fb.e(f"v_mov_b32 v{NM+r}, 0xff800000")
    fb.e(f"s_mov_b32 s{S_K0}, 0")
    fb.e(f"s_mov_b32 s{S_K1}, 4096")
    fb.e("s_mov_b32 s52, 0")
    def lin_kv(z, isk, slot):
        for j in range(8):
            if j % 4 == 0:
                z.e(m0_set(slot * SLOT + (j >> 2) * 4096)); z.e("s_nop 0")
            z.e(k_dma(j) if isk else v_dma(j))
        r0_ = S_K0 if isk else S_V0
        z.e(f"s_add_u32 s{r0_}, s{r0_}, {SLOT}")
        z.e(f"s_add_u32 s{r0_+1}, s{r0_+1}, {SLOT}")
    fl = Seq()
    fl.e("F_FBT:")
    fl.e("s_barrier")
    lin_kv(fl, True, 0)
    fl.e("s_waitcnt vmcnt(0)")
    fl.e("s_barrier")
    fl.e("s_mov_b32 s53, 0")
    fi = Seq()
    fi.e("F_FBI:")
    for t in range(4): fi.e(k_read(0, 0, t))
    for t in range(4): fi.e(f"v_add_u32 v{KA+t}, 4096, v{KA+t}")
    fi.e("s_waitcnt lgkmcnt(0)")
    for qt in range(4):
        for t in range(4): fi.e(qk_mfma(0, qt, t, czero=True))
    fi.e("s_nop 7")
    for r in range(16): fi.e(f"v_max_f32 v{NM+r}, v{NM+r}, v{SR+r}")
    fi.e("s_add_u32 s53, s53, 1")
    fi.e("s_cmp_lt_u32 s53, 8")
    fi.e("s_cbranch_scc1 F_FBI")
    fo = Seq()
    for t in range(4): fo.e(f"v_subrev_u32 v{KA+t}, {SLOT}, v{KA+t}")
    fo.e("s_add_u32 s52, s52, 1")
    fo.e("s_cmp_lt_u32 s52, 16")
    fo.e("s_cbranch_scc1 F_FBT")
    fz = Seq()
    for qt in range(4):
        r = NM + 4 * qt
        fz.e(f"v_max3_f32 v{T+qt}, v{r}, v{r+1}, v{r+2}")
        fz.e(f"v_max_f32 v{T+qt}, v{T+qt}, v{r+3}")
    for sw in ("v_permlane16_swap_b32", "v_permlane32_swap_b32"):
        for qt in range(4): fz.e(f"v_mov_b32 v{T+4+qt}, v{T+qt}")
        for qt in range(4): fz.e(f"{sw} v{T+qt}, v{T+4+qt}")
        for qt in range(4): fz.e(f"v_max_f32 v{T+qt}, v{T+qt}, v{T+4+qt}")
    for qt in range(4):
        for r in range(4): fz.e(f"v_sub_f32 v{NM+4*qt+r}, 0, v{T+qt}")
    for r in range(128): fz.e(f"v_accvgpr_write_b32 {a(r)}, 0")
    fz.e(f"s_mov_b32 s{S_K0}, 0")
    fz.e(f"s_mov_b32 s{S_K1}, 4096")
    fz.e(f"s_mov_b32 s{S_V0}, 0")
    fz.e(f"s_mov_b32 s{S_V1}, 4096")
    fz.e("s_barrier")
    lin_kv(fz, True, 0); lin_kv(fz, True, 1); lin_kv(fz, False, 2)
    fz.e("s_waitcnt vmcnt(0)")
    fz.e("s_barrier")
    for t in range(4): fz.e(k_read(0, 0, t))
    fz.e("s_branch F_QK0")

    L = list
    main = L(q) + L(e0) + L(mx) + L(e1) + L(b0) + L(b1) + L(b0) + L(b1) + L(b0) + L(ep) + L(sm) + L(gm)
    fbt = (L(e0) + L(mx) + L(e1) + L(b0) + L(ep) + L(fb) + L(fl) + L(fi) + L(fi) + L(fo) + L(fl) + L(fi) + L(fo) + L(fz)
           + L(e0) + L(e1) + L(b0) + L(b1))
    resolve_waits([main, fbt])
    errs = validate(main, "main") + validate(fbt, "fb")
    for z in (sp1, sp2, sp3): errs += validate(z, "spin")
    text = "".join(z.text() for z in (q, e0, mx, e1, b0, b1, ep, sm, gm, sp1, sp2, sp3, fb, fl, fi, fo, fz))
    info = dict(qtail=qtail, etail=etail, gtail=gtail, gready=gready - G[24], gdrain=gdrain / 16, gbar=gbar / 16, gend=gend / 16)
    return text, errs, dict(vgpr=256, agpr=256, lds=5 * SLOT, grid=256, block=256, info=info)


NAME = "recurrent_scan__mha_block_cached__moe_arch_mod__prompt"
def build(out, stamps=False, fine=False, **kw):
    STAMP["on"] = stamps; STAMP["fine"] = fine
    ref = open(f"cdna_kernels/{NAME}.s.ref").read().split("\n")
    head = [l for l in ref if l.startswith(";") and "@launch" not in l]
    t, e, m = gen_f(**kw)
    for x in e[:60]: print("VALIDATE:", x)
    assert not e
    head.append(f"; @launch grid=({m['grid']},1,1) block=({m['block']},1,1) lds={m['lds']}")
    tt, dd = kernel_text(NAME + "_kernel", t, m["vgpr"], m["agpr"])
    open(out, "w").write("\n".join(head) + '\n.amdgcn_target "amdgcn-amd-amdhsa--gfx950"\n' + tt + dd)
    return m["info"]

if __name__ == "__main__":
    print(build("f.s"))
    print(build("fst.s", stamps=True))
    print(build("fst0.s", stamps=True, pf=0))
    print(build("fsf.s", stamps=True, fine=True))
```

```python
from asmlib import *
from gen_small import *

MF = "v_mfma_f32_16x16x32_bf16"
P0 = 0
SR = 128
NM = 160
LM = 176
ONES = 192
LV = 196
KA = 204
VA = 208
KD = 216
VD = 220
VL16 = 222
VWQ = 223
WA = 196
WF = 224
QF = 128
KF_ = 192
VF = 224
S_W = 3
SRD_K, SRD_V, SRD_W, SRD_X, SRD_O = 8, 12, 16, 20, 24
S_WB = 30
S_K0, S_K1, S_V0, S_V1 = 31, 32, 33, 34
S_CNT = 35
S_C = 36
S_FB = 37
S_Q = 38
S_WQ = 42
SLOT = 32768
LDS_FLAG = 4 * SLOT
C_SCALE = 0x3e0293ee

def Preg(buf, u, qt): return P0 + buf * 64 + (u * 4 + qt) * 4
def Sreg(kb, qt): return SR + (kb & 1) * 16 + qt * 4
def Oreg(db, qt): return (db * 4 + qt) * 4
def Qreg(qt, t): return QF + (qt * 4 + t) * 4
def Kf(kb, t): return KF_ + (kb & 1) * 16 + 4 * t
def Vf(db, u): return VF + (db & 1) * 16 + 4 * u


class Sched:
    def __init__(self, n, cap=2, modulo=False):
        self.n = n; self.cap = [cap] * n; self.mod = modulo
        self.sc = [[] for _ in range(n)]; self.mem = [[] for _ in range(n)]; self.va = [[] for _ in range(n)]
        self.used = [0] * n
        self.tail = []
    def _g(self, g): return g % self.n if self.mod else g
    def free(self, g): return self.cap[self._g(g)] - self.used[self._g(g)]
    def put_sc(self, g, it, exact=False, maxper=1):
        while True:
            if not self.mod and g >= self.n:
                self.tail.append(it); return g
            k = self._g(g)
            if exact or (len(self.sc[k]) < maxper and not self.mem[k]):
                self.sc[k].append((g, it)); return g
            g += 1
    def put_mem(self, g, it, cost=1, exact=True):
        while True:
            if not self.mod and g >= self.n:
                self.tail.append(it); return g
            k = self._g(g)
            if self.free(g) >= cost and (exact or not self.sc[k]):
                self.mem[k].append((g, it)); self.used[k] += cost; return g
            assert not exact, f"mem gap {g} full"
            g += 1
    def put_va(self, g, it, cost=1, exact=False):
        while True:
            if not self.mod and g >= self.n:
                self.tail.append(it); return g
            k = self._g(g)
            if self.free(g) >= cost:
                self.va[k].append((g, it)); self.used[k] += cost; return g
            assert not exact, f"valu gap {g} full"
            g += 1
    def gap(self, k):
        return self.sc[k] + self.mem[k] + self.va[k]


def emit_linear(q, mf, sch):
    for k, m in enumerate(mf):
        q.e(m)
        for g, it in sch.gap(k): q.e(it)
    for it in sch.tail: q.e(it)


def qk_mfma(kb, qt, t, czero=False, first=None):
    d = v(Sreg(kb, qt), 4)
    if first is None: first = (t == 0)
    c = d if not first else ("0" if czero else v(NM + 4 * qt, 4))
    return I(f"{MF} {d}, {a(Kf(kb, t), 4)}, {a(Qreg(qt, t), 4)}, {c}")
def pv_mfma(pbuf, db, qt, u):
    d = a(Oreg(db, qt), 4)
    return I(f"{MF} {d}, {a(Vf(db, u), 4)}, {v(Preg(pbuf, u, qt), 4)}, {d}")
def sum_mfma(pbuf, qt, u):
    d = v(LM + 4 * qt, 4)
    return I(f"{MF} {d}, {v(ONES, 4)}, {v(Preg(pbuf, u, qt), 4)}, {d}")
def k_read(slot, kb, t):
    return I(f"ds_read_b128 {a(Kf(kb, t), 4)}, {v(KA + t)} offset:{slot * SLOT + kb * 4096}")
def v_read(slot, db, u, x):
    return I(f"ds_read_b64_tr_b16 {a(Vf(db, u) + 2 * x, 2)}, {v(VA + db)} offset:{slot * SLOT + u * 8192 + x * 4096}")
def exp_i(kb, e):
    r = Sreg(kb, e >> 2) + (e & 3)
    return I(f"v_exp_f32 {v(r)}, {v(r)}")
def cvt_i(pbuf, kb, e):
    r = Sreg(kb, e >> 2) + (e & 3)
    d = Preg(pbuf, kb >> 1, e >> 2) + 2 * (kb & 1) + ((e & 3) >> 1)
    return I(f"v_cvt_pk_bf16_f32 {v(d)}, {v(r)}, {v(r + 1)}")
def add_i(kb, e):
    r = Sreg(kb, e >> 2) + (e & 3)
    l = LV + 2 * (e >> 2) + (e & 1)
    return I(f"v_add_f32 {v(l)}, {v(l)}, {v(r)}")
def k_dma(j):
    return I(f"buffer_load_dwordx4 {v(KD + (j & 3))}, {s(SRD_K, 4)}, {s(S_K0 + (j >> 2))} offen offset:{(j & 3) * 1024} lds")
def v_dma(j):
    return I(f"buffer_load_dwordx4 {v(VD + (j & 1))}, {s(SRD_V, 4)}, {s(S_V0 + (j >> 2))} offen offset:{(j & 3) * 1024} lds")
def m0_set(off):
    return I(f"s_add_u32 m0, {s(S_WB)}, {off}")


def gen_k1(nu=2, dma_pos=None, dbg=None, rowmajor=False, qko="chain", pvo="chain"):
    q = Seq()
    q.e("s_cmp_ge_u32 s2, 256")
    q.e("s_cbranch_scc1 K1_END")
    q.e(f"s_load_dwordx2 s[4:5], s[0:1], {K_WS}")
    q.e(f"s_load_dwordx2 s[6:7], s[0:1], {K_WQ}")
    q.e(f"s_load_dwordx4 s[44:47], s[0:1], {K_K}")
    q.e("v_lshrrev_b32 v1, 6, v0")
    q.e("v_and_b32 v2, 63, v0")
    q.e(f"v_readfirstlane_b32 s{S_W}, v1")
    q.e("s_and_b32 s28, s2, 31")
    q.e("s_lshr_b32 s29, s2, 5")
    q.e("v_lshrrev_b32 v3, 4, v2")
    q.e("v_and_b32 v4, 15, v2")
    q.e(f"v_lshlrev_b32 v{VL16}, 4, v2")
    q.e(f"v_lshlrev_b32 v{LV+4}, 10, v4")
    q.e(f"v_lshl_add_u32 v{LV+4}, v3, 4, v{LV+4}")
    q.e("v_lshlrev_b32 v5, 2, v3")
    q.e("v_xor_b32 v5, v4, v5")
    q.e("v_lshlrev_b32 v5, 4, v5")
    q.e("v_lshl_add_u32 v6, v1, 5, v3")
    q.e(f"v_lshl_add_u32 v{VWQ}, v6, 13, v5")
    q.e(f"s_lshl_b32 s{S_WB}, s{S_W}, 13")
    q.e("s_lshl_b32 s43, s28, 8")
    q.e("s_waitcnt lgkmcnt(0)")
    stamp(q, 2, 0, vt=10)
    q.e(f"s_add_u32 s{SRD_W}, s6, s43")
    q.e(f"s_addc_u32 s{SRD_W+1}, s7, 0")
    q.e(f"s_sub_u32 s{SRD_W+2}, {4*MB}, s43")
    q.e(f"s_mov_b32 s{SRD_W+3}, 0x00020000")
    def wq_dma(z_sc, z_mem, rho):
        out = []
        for i in range(8):
            z_sc(I(f"s_mov_b32 s{S_WQ}, {rho * MB + i * 32768}"))
            z_sc(m0_set((1 + rho) * SLOT + i * 1024))
            out.append(z_mem(I(f"buffer_load_dwordx4 v{VWQ}, {s(SRD_W,4)}, s{S_WQ} offen lds")))
        return out
    def lin_dma(ins):
        q.e("s_nop 0"); q.e(ins); return ins
    wq = {}
    wq[0] = wq_dma(q.e, lin_dma, 0)
    q.e("s_lshl_b32 s43, s29, 2")
    q.e(f"s_add_u32 s43, s43, s{S_W}")
    q.e("s_lshl_b32 s48, s43, 16")
    srd(q, SRD_X, 4, 65536, off="s48")
    XQB = [("a", 0), ("a", 64), ("a", 192), ("v", 128)]
    def xq_reg(rho, qt, tt):
        p, b = XQB[rho]
        return rng(p, b + (qt * 4 + tt) * 4, 4)
    def xq_load(rho, qt, tt):
        if rowmajor:
            return I(f"buffer_load_dwordx4 {xq_reg(rho, qt, tt)}, v{LV+4}, {s(SRD_X,4)}, s{S_Q+qt} offen offset:{tt*64}")
        return I(f"buffer_load_dwordx4 {xq_reg(rho, qt, tt)}, v{VL16}, {s(SRD_X,4)}, s{S_Q+qt} offen offset:{tt*1024}")
    def xq_soff(rho, qt):
        return I(f"s_mov_b32 s{S_Q+qt}, {qt*16384 + rho*(256 if rowmajor else 4096)}")
    xq = {}
    def xq_lin(rho):
        for qt in range(4): q.e(xq_soff(rho, qt))
        xq[rho] = [q.e(xq_load(rho, qt, tt)) for qt in range(4) for tt in range(4)]
    xq_lin(0)
    wq[1] = wq_dma(q.e, lin_dma, 1)
    xq_lin(1)
    wq[2] = wq_dma(q.e, lin_dma, 2)
    q.e("s_lshl_b32 s48, s28, 19")
    srd(q, SRD_K, 44, 524288, off="s48")
    srd(q, SRD_V, 46, 524288, off="s48")
    q.e("s_lshl_b32 s48, s43, 19")
    q.e("s_lshl_b32 s49, s28, 12")
    q.e("s_add_u32 s48, s48, s49")
    q.e(f"s_add_u32 s48, s48, {WS_OF}")
    srd(q, SRD_O, 4, 3 * 131072 + 4096, off="s48")
    q.e(f"s_mov_b32 s{S_C}, {C_SCALE}")
    q.e(f"s_mov_b32 s{S_FB}, 0")
    q.e("v_xor_b32 v5, v3, v4")
    q.e("v_lshlrev_b32 v6, 8, v4")
    for t in range(4):
        q.e(f"v_xor_b32 v7, {4*t}, v5")
        q.e(f"v_lshl_add_u32 v{KA+t}, v7, 4, v6")
    q.e("v_lshrrev_b32 v5, 2, v2")
    q.e("v_and_b32 v6, 7, v5")
    q.e("v_and_b32 v7, 3, v2")
    q.e("v_lshlrev_b32 v8, 8, v5")
    q.e("v_lshl_add_u32 v8, v7, 3, v8")
    q.e(f"v_add_u32 v8, {2*SLOT}, v8")
    for db in range(8):
        q.e(f"v_xor_b32 v9, {db}, v6")
        q.e(f"v_lshl_add_u32 v{VA+db}, v9, 5, v8")
    q.e("v_lshlrev_b32 v8, 13, v1")
    q.e("v_lshl_add_u32 v8, v3, 8, v8")
    for j in range(4):
        q.e(f"v_add_u32 v9, {4*j}, v3")
        q.e("v_xor_b32 v9, v9, v4")
        q.e(f"v_lshl_add_u32 v{KD+j}, v9, 4, v8")
    for j in range(2):
        q.e(f"v_add_u32 v9, {4*j}, v3")
        q.e("v_lshlrev_b32 v9, 1, v9")
        q.e("v_xor_b32 v9, v9, v4")
        q.e(f"v_lshl_add_u32 v{VD+j}, v9, 4, v8")
    q.e("v_and_b32 v6, 3, v5")
    q.e("v_lshl_add_u32 v8, v3, 3, v6")
    q.e("v_lshlrev_b32 v8, 8, v8")
    q.e("v_lshl_add_u32 v8, v7, 4, v8")
    q.e(f"v_add_u32 v8, {SLOT}, v8")
    for s_ in range(4):
        q.e(f"v_xor_b32 v9, {s_}, v6")
        q.e(f"v_lshl_add_u32 v{WA+s_}, v9, 6, v8")
    q.e(f"s_mov_b32 s{S_K0}, 0")
    q.e(f"s_mov_b32 s{S_K1}, 4096")
    q.e(f"s_mov_b32 s{S_V0}, 0")
    q.e(f"s_mov_b32 s{S_V1}, 4096")

    def w_read(b, tt, x):
        dt = b & 7
        return I(f"ds_read_b64_tr_b16 {v(WF + (b & 1) * 16 + 4 * tt + 2 * x, 2)}, {v(WA + (dt >> 1))} "
                 f"offset:{tt * 8192 + x * 1024 + 8 * (dt & 1)}")
    q.e(wait(vm=wq[0]))
    q.e("s_barrier")
    for tt in range(4):
        for x in range(2): q.e(w_read(0, tt, x))
    q.e(wait(vm=xq[0], lgn=0))
    stamp(q, 2, 1, vt=SR)
    mf = []
    for b in range(32):
        rho, dt = b >> 3, b & 7
        for qt in range(4):
            for tt in range(4):
                d = v((dt * 4 + qt) * 4, 4)
                c = "0" if (rho == 0 and tt == 0) else d
                mf.append(I(f"{MF} {d}, {v(WF + (b & 1) * 16 + 4 * tt, 4)}, {xq_reg(rho, qt, tt)}, {c}"))
    sch = Sched(512)
    for b in range(31):
        G = 16 * b
        k = 0
        for gp in (1, 3, 5, 7):
            for x in range(2):
                sch.put_mem(G + gp, w_read(b + 1, (gp - 1) // 2, x))
        if (b & 7) == 6:
            for s_ in range(4):
                sch.put_va(G + 8, I(f"v_add_u32 v{WA+s_}, {SLOT}, v{WA+s_}"))
    def gap_issuer(start):
        st = {"g": start}
        def nxt():
            while (st["g"] % 16) in (0, 1, 3, 5, 7, 14, 15) or sch.free(st["g"]) < 2 or sch.sc[st["g"]]:
                st["g"] += 1
            return st["g"]
        def z_sc(ins):
            g = st["g"]
            while sch.mem[g] or sch.sc[g] or (g % 16) in (0, 14, 15): g += 1
            sch.put_sc(g, ins, exact=True); st["g"] = g + 1; return ins
        def z_mem(ins):
            g = nxt(); sch.put_mem(g, ins, cost=2); st["g"] = g + 1; return ins
        return z_sc, z_mem, st
    z_sc, z_mem, st = gap_issuer(2)
    for qt in range(4): z_sc(xq_soff(2, qt))
    xq[2] = [z_mem(xq_load(2, qt, tt)) for qt in range(4) for tt in range(4)]
    wq[3] = wq_dma(z_sc, z_mem, 3)
    assert st["g"] < 128 - 18, st
    z_sc, z_mem, st = gap_issuer(128 + 2)
    for qt in range(4): z_sc(xq_soff(3, qt))
    xq[3] = [z_mem(xq_load(3, qt, tt)) for qt in range(4) for tt in range(4)]
    def kv_dma(z_sc, z_mem, isk, slot):
        out = []
        for j in range(8):
            if j % 4 == 0: z_sc(m0_set(slot * SLOT + (j >> 2) * 4096))
            out.append(z_mem(k_dma(j) if isk else v_dma(j)))
        r0 = S_K0 if isk else S_V0
        z_sc(I(f"s_add_u32 s{r0}, s{r0}, {SLOT}"))
        z_sc(I(f"s_add_u32 s{r0+1}, s{r0+1}, {SLOT}"))
        return out
    k0 = kv_dma(z_sc, z_mem, True, 0)
    assert st["g"] < 256 - 18, st
    z_sc, z_mem, st = gap_issuer(256 + 2)
    k1 = kv_dma(z_sc, z_mem, True, 1)
    v0 = kv_dma(z_sc, z_mem, False, 2)
    assert st["g"] < 384 - 18, st
    for b in range(31):
        G = 16 * b
        rho = b >> 3
        if (b & 7) == 6 and rho < 3:
            need = wq[rho + 1] + (k0 if rho == 2 else [])
            sch.put_sc(G + 14, wait(vm=need, lgn=0), exact=True)
            sch.put_sc(G + 15, I("s_barrier"), exact=True)
        elif (b & 7) == 7:
            sch.put_sc(G + 14, wait(vm=xq[rho + 1], lgn=0), exact=True)
        else:
            sch.put_sc(G + 14, wait(lgn=0), exact=True)
    for r in range(128):
        sch.put_va(256 + 1, I(f"v_accvgpr_write_b32 {a(r)}, 0"))
    kr0 = [k_read(0, 0, t) for t in range(4)]
    for t in range(4): sch.put_mem(16 * 31 + 1 + 2 * (t >> 1), kr0[t])
    for dt in range(8):
        for qt in range(4):
            r = (dt * 4 + qt) * 4
            g0 = 384 + dt * 16 + qt * 4 + 3 + 6
            d = Qreg(qt, dt >> 1) + 2 * (dt & 1)
            for e in range(4):
                g0 = sch.put_va(g0, I(f"v_mul_f32 {v(r+e)}, s{S_C}, {v(r+e)}"))
            g0 = sch.put_va(g0, I(f"v_cvt_pk_bf16_f32 {v(r)}, {v(r)}, {v(r+1)}"))
            g0 = sch.put_va(g0, I(f"v_cvt_pk_bf16_f32 {v(r+2)}, {v(r+2)}, {v(r+3)}"))
            g0 = sch.put_va(g0, I(f"v_accvgpr_write_b32 {a(d)}, {v(r)}"))
            g0 = sch.put_va(g0, I(f"v_accvgpr_write_b32 {a(d+1)}, {v(r+2)}"))
    emit_linear(q, mf, Sched(512)) if False else None
    for k, m in enumerate(mf):
        q.e(m)
        for g, it in sch.gap(k): q.e(it)
    q.e("s_nop 3")
    for it in sch.tail: q.e(it)
    for r in range(4): q.e(f"v_mov_b32 v{ONES+r}, 0x3f803f80")
    stamp(q, 2, 2, vt=244)

    wstart = []; pos = 0; mkeys = []
    sumwin = {3: 0, 4: 1, 5: 2, 6: 3}
    for w in range(8):
        wstart.append(pos)
        for qt in range(4):
            for t in range(4): mkeys.append(("qk", w, qt, (3 - t) if (qko == "snake" and qt & 1) else t, t == 0))
        if pvo == "sameA":
            for u in range(4):
                for qt in range(4): mkeys.append(("pv", w, qt, u))
        else:
            for qt in range(4):
                for u in range(4): mkeys.append(("pv", w, qt, (3 - u) if (pvo == "snake" and not qt & 1) else u))
        pos += 32
        if w in sumwin:
            for u in range(nu): mkeys.append(("sum", sumwin[w], u))
            pos += nu
    PL = pos
    wstart.append(PL)
    def G(w, g):
        return wstart[w & 7] + (PL if w >= 8 else 0) + g
    ss = Sched(PL, modulo=True)
    place = {}
    for kb in range(8):
        for e in range(16):
            p = 8 + 2 * e
            g = G(kb, p) if p < 32 else G(kb + 1, p - 32)
            place[("exp", kb, e)] = ss.put_va(g, ("exp", kb, e), cost=2, exact=True)
    for w in range(8):
        for t in range(4):
            place[("kr", w + 1, t)] = ss.put_mem(G(w, 17 + 2 * (t >> 1)), ("kr", w + 1, t))
        for u in range(4):
            for x in range(2):
                g = G(w, 21 + 2 * u) if u < 2 else G(w + 1, 2 * u - 3)
                place[("vr", w + 1, u, x)] = ss.put_mem(g, ("vr", w + 1, u, x))
    if dma_pos is None:
        dma_pos = [(w, g) for w in range(4) for g in (5, 9, 25, 29)]
    for j, (w, g) in enumerate(dma_pos):
        isk = j < 8
        if j % 4 == 0:
            ss.put_sc(G(w, g - 1), ("m0", isk, (j >> 2) & 1), exact=True)
        ss.put_mem(G(w, g), ("dma", isk, j & 7), cost=2)
        if j % 8 == 7:
            ss.put_sc(G(w, g + 1), ("soff", isk, 0), exact=True)
            ss.put_sc(G(w, g + 3), ("soff", isk, 1))
    for w in range(8):
        if w == 7:
            ss.put_sc(G(w, 12), ("waitbar",), exact=True)
            ss.put_sc(G(w, 14), ("bar",), exact=True)
        else:
            ss.put_sc(G(w, 14), ("waitv", w), exact=True)
        ss.put_sc(G(w, 30), ("waitk", w + 1), exact=True)
    ss.put_sc(G(5, 2), ("cnt",))
    fifo = []
    for kb in range(8):
        for e in range(16):
            ge = place[("exp", kb, e)]
            if kb >= 2 * nu: fifo.append((ge + 1, ("add", kb, e)))
            if e & 1: fifo.append((ge + 1, ("cvt", kb, e - 1)))
    fifo.sort(key=lambda z: z[0])
    rot = [f for f in fifo if f[1][1] >= 6] + [f for f in fifo if f[1][1] < 6]
    for ge, key in rot:
        place[key] = ss.put_va(ge, key)
    for key, g in place.items():
        if key[0] in ("add", "cvt", "exp"):
            kb, e = key[1], key[2]
            dl = G(kb + 2, 4 * (e >> 2))
            assert g < dl, (key, g, dl)
        if key[0] == "cvt":
            kb, e = key[1], key[2]
            dl = PL + mkeys.index(("pv", 0, e >> 2, kb >> 1)) - 1
            assert g < dl, (key, g, dl)
    wrap = {k for k, g in place.items() if g >= PL}
    util = sum(ss.used)
    info = dict(PL=PL, used=util, cap=2 * PL, wrap=sorted(wrap))

    reads = {}
    def mk(key, par):
        kind = key[0]
        if kind == "qk": return qk_mfma(key[1], key[2], key[3], first=key[4])
        if kind == "pv": return pv_mfma(par, key[1], key[2], key[3])
        if kind == "sum": return sum_mfma(par, key[1], key[2])
        if kind == "exp": return exp_i(key[1], key[2])
        if kind == "cvt": return cvt_i(1 - par, key[1], key[2])
        if kind == "add": return add_i(key[1], key[2])
        if kind == "kr":
            kb = key[1]
            i = k_read((1 - par) if kb < 8 else par, kb & 7, key[2])
            reads.setdefault((par, "k", kb), []).append(i); return i
        if kind == "vr":
            db = key[1]
            i = v_read(par if db < 8 else 1 - par, db & 7, key[2], key[3])
            reads.setdefault((par, "v", db), []).append(i); return i
        if kind == "dma": return k_dma(key[2]) if key[1] else v_dma(key[2])
        if kind == "m0":
            slot = par if key[1] else 2 + (1 - par)
            return m0_set(slot * SLOT + key[2] * 4096)
        if kind == "soff":
            r = (S_K0 if key[1] else S_V0) + key[2]
            return I(f"s_add_u32 s{r}, s{r}, {SLOT}")
        if kind == "waitbar": return wait(vmn=0, lgn=0)
        if kind == "bar": return I("s_barrier")
        if kind == "waitv":
            w = key[1]
            return wait(lg=reads.setdefault((par, "v", w) if w else (1 - par, "v", 8), []))
        if kind == "waitk": return wait(lg=reads.setdefault((par, "k", key[1]), []))
        if kind == "cnt":
            return I(f"s_add_u32 s{S_CNT}, s{S_CNT}, 1") if par == 1 else I(f"s_cmp_eq_u32 s{S_CNT}, 7")
        raise KeyError(key)

    def body(par):
        z = Seq()
        for k in range(PL):
            z.e(mk(mkeys[k], par))
            for g, key in ss.gap(k):
                z.e(mk(key, par if g < PL else 1 - par))
        return z

    e0 = Seq()
    e0.e("K1_QK0:")
    for r in range(8): e0.e(f"v_mov_b32 v{LV+r}, 0")
    for r in range(16): e0.e(f"v_mov_b32 v{LM+r}, 0")
    e0.e(f"s_mov_b32 s{S_CNT}, 0")
    e0.e("s_waitcnt lgkmcnt(0)")
    kr1 = [k_read(0, 1, t) for t in range(4)]
    for qt in range(4):
        for t in range(4):
            e0.e(qk_mfma(0, qt, t, czero=True))
            if qt == 0: e0.e(kr1[t])
    e0.e(f"s_cmp_lg_u32 s{S_FB}, 0")
    e0.e("s_cbranch_scc1 K1_HAVEM")
    mx = Seq()
    T = WF
    for qt in range(4):
        if qt == 3: mx.e("s_nop 1")
        r = Sreg(0, qt)
        mx.e(f"v_max3_f32 v{T+qt}, v{r}, v{r+1}, v{r+2}")
        mx.e(f"v_max_f32 v{T+qt}, v{T+qt}, v{r+3}")
    for sw in ("v_permlane16_swap_b32", "v_permlane32_swap_b32"):
        for qt in range(4): mx.e(f"v_mov_b32 v{T+4+qt}, v{T+qt}")
        for qt in range(4): mx.e(f"{sw} v{T+qt}, v{T+4+qt}")
        for qt in range(4): mx.e(f"v_max_f32 v{T+qt}, v{T+qt}, v{T+4+qt}")
    for qt in range(4):
        for r in range(4): mx.e(f"v_sub_f32 v{NM+4*qt+r}, 0, v{T+qt}")
    e1 = Seq()
    e1.e("K1_HAVEM:")
    e1.e("s_nop 5")
    for r in range(16): e1.e(f"v_add_f32 v{SR+r}, v{SR+r}, v{NM+r}")
    e1.e("s_waitcnt lgkmcnt(0)")
    mf = [qk_mfma(kb, qt, t) for kb in range(1, 8) for qt in range(4) for t in range(4)]
    n = len(mf)
    ps = Sched(n, cap=4)
    GP = lambda kb, g: (kb - 1) * 16 + g
    for kb in range(1, 7):
        rs = [k_read(0, kb + 1, t) for t in range(4)]
        for t in range(4): ps.put_mem(GP(kb, 1 + 2 * (t >> 1)), rs[t])
        if kb < 6: ps.put_sc(GP(kb, 14), wait(lg=rs), exact=True)
    ps.put_sc(GP(6, 14), wait(vmn=0, lgn=0), exact=True)
    ps.put_sc(GP(6, 15), I("s_barrier"), exact=True)
    for t in range(4): ps.put_mem(GP(7, 1 + 2 * (t >> 1)), mk(("kr", 8, t), 1))
    for u in range(4):
        for x in range(2):
            if ("vr", 8, u, x) not in wrap: ps.put_mem(GP(7, 5 + 2 * u), mk(("vr", 8, u, x), 1))
    pl2 = {}
    cur = 0
    for kb in range(8):
        for e in range(16):
            rdy = 0 if kb == 0 else GP(kb, 4 * (e >> 2) + 3 + 4)
            keys = [("exp", kb, e)] + ([("add", kb, e)] if kb >= 2 * nu else []) + ([("cvt", kb, e - 1)] if e & 1 else [])
            for key in keys:
                if key in wrap: continue
                if key[0] == "exp":
                    cur = ps.put_va(max(cur, rdy), mk(key, 1), cost=2); pl2[key] = cur
                else:
                    pl2[key] = ps.put_va(pl2[("exp", kb, e)] + 1, mk(key, 1))
    for key, g in pl2.items():
        kb, e = key[1], key[2]
        if kb + 2 < 8: assert g < GP(kb + 2, 4 * (e >> 2)), (key, g)
    for k, m in enumerate(mf):
        e1.e(m)
        for g, it in ps.gap(k): e1.e(it)
    e1.e("s_nop 4")
    tl = [i for i in ps.tail if i.kind == "trans"] + [I("s_nop 0")] + [i for i in ps.tail if i.kind != "trans"]
    for it in tl: e1.e(it)
    e1.e(mk(("waitk", 8), 1))
    stamp(e1, 2, 3, vt=244)

    b0 = Seq(); b0.e("K1_LOOP:"); b0.extend(body(0)); b0.e("s_cbranch_scc1 K1_EPI")
    b1 = body(1); b1.e("s_branch K1_LOOP")

    ep = Seq()
    ep.e("K1_EPI:")
    mf = [sum_mfma(1, qt, u) for qt in range(4) for u in range(nu)]
    ns = len(mf)
    mf += [pv_mfma(1, db, qt, u) for db in range(8) for qt in range(4) for u in range(4)]
    es = Sched(len(mf), cap=2)
    GE = lambda db, g: ns + 16 * db + g
    pre = Seq()
    wl = sorted(wrap, key=lambda k: place[k])
    vr0 = []
    for key in wl:
        if key[0] == "vr": vr0.append(pre.e(mk(key, 0)))
    for key in wl:
        if key[0] == "exp": pre.e(mk(key, 0))
    pre.e("s_nop 0")
    for key in wl:
        if key[0] == "cvt": pre.e(mk(key, 0))
    for key in wl:
        if key[0] == "add": pre.e(mk(key, 0))
    pre.e("s_waitcnt lgkmcnt(0)")
    for db in range(7):
        rs = []
        for u in range(4):
            for x in range(2):
                i = v_read(1, db + 1, u, x); rs.append(i)
                es.put_mem(GE(db, 1 + 2 * u), i)
        es.put_sc(GE(db, 14), wait(lg=rs), exact=True)
    RL = WF; TT = WF + 4
    g = 0
    def fin(text, gap=0):
        nonlocal g
        g = es.put_va(g + gap, I(text), cost=2 if "rcp" in text else 1)
    for qt in range(4): fin(f"v_add_f32 v{RL+qt}, v{LV+2*qt}, v{LV+2*qt+1}")
    for sw in ("v_permlane16_swap_b32", "v_permlane32_swap_b32"):
        for qt in range(4): fin(f"v_mov_b32 v{TT+qt}, v{RL+qt}")
        for qt in range(4): fin(f"{sw} v{RL+qt}, v{TT+qt}", gap=1 if qt == 0 else 0)
        for qt in range(4): fin(f"v_add_f32 v{RL+qt}, v{RL+qt}, v{TT+qt}")
    g = max(g, ns + 4)
    if nu:
        for qt in range(4): fin(f"v_add_f32 v{RL+qt}, v{RL+qt}, v{LM+4*qt}")
    es.put_sc(0, I("s_mov_b32 s50, 0x4e800000"))
    for qt in range(4): fin(f"v_cmp_nle_f32 s[{52+2*qt}:{53+2*qt}], v{RL+qt}, s50")
    for qt in range(4): fin(f"v_rcp_f32 v{RL+qt}, v{RL+qt}")
    g2 = g + 1
    g2 = es.put_sc(g2, I("s_or_b64 s[52:53], s[52:53], s[54:55]")) + 1
    g2 = es.put_sc(g2, I("s_or_b64 s[56:57], s[56:57], s[58:59]")) + 1
    g2 = es.put_sc(g2, I("s_or_b64 s[52:53], s[52:53], s[56:57]")) + 1
    g2 = es.put_sc(g2, I("s_or_b32 s52, s52, s53")) + 1
    g2 = es.put_sc(g2, I(f"s_lshl_b32 s53, s{S_W}, 2")) + 1
    g2 = es.put_sc(g2, I(f"s_add_u32 s53, s53, {LDS_FLAG}")) + 1
    g2 = es.put_va(g2, I(f"v_mov_b32 v{TT}, s52"))
    g2 = es.put_va(g2, I(f"v_mov_b32 v{TT+1}, s53"))
    g2 = es.put_va(g2, I(f"v_mov_b32 v{TT+2}, {LDS_FLAG}")) + 1
    fw = I(f"ds_write_b32 v{TT+1}, v{TT}")
    g2 = es.put_mem(g2, fw, exact=False) + 4
    g2 = es.put_sc(g2, wait(lg=[fw])) + 1
    g2 = es.put_sc(g2, I("s_barrier")) + 1
    FL = WF + 8
    fr = I(f"ds_read_b128 {v(FL,4)}, v{TT+2}")
    g2 = es.put_mem(g2, fr, exact=False)
    for qt in range(4): es.put_sc(2 + qt, I(f"s_mov_b32 s{S_Q+qt}, {qt*131072}"))
    gn = g + 2
    grp = 0
    for s_ in range(4):
        for qt in range(4):
            st_ = (grp % 5) * 12; grp += 1
            rdy = GE(2 * s_ + 1, 4 * qt + 3 + 5)
            gn = max(gn, rdy)
            for x in range(2):
                for r in range(4):
                    gn = es.put_va(gn, I(f"v_accvgpr_read_b32 v{st_+4+4*x+r}, {a(Oreg(2*s_+x, qt)+r)}"))
            for k in range(8):
                gn = es.put_va(gn, I(f"v_mul_f32 v{st_+4+k}, v{st_+4+k}, v{RL+qt}"))
            for k in range(4):
                gn = es.put_va(gn, I(f"v_cvt_pk_bf16_f32 v{st_+k}, v{st_+4+2*k}, v{st_+5+2*k}"))
            stn = I(f"buffer_store_dwordx4 {v(st_,4)}, v{VL16}, {s(SRD_O,4)}, s{S_Q+qt} offen offset:{s_*1024}")
            gn2 = es.put_mem(gn + 1, stn, cost=2, exact=False)
    stamp(ep, 2, 4, vt=244)
    ep.extend(pre)
    for k, m in enumerate(mf):
        ep.e(m)
        for g_, it in es.gap(k): ep.e(it)
    first_tail = True
    ep.e("s_nop 3")
    for it in es.tail: ep.e(it)
    stamp(ep, 2, 5, vt=244)
    if STAMP["on"]: ep.e("s_waitcnt vmcnt(0)")
    stamp(ep, 2, 6, vt=244)
    ep.e("s_waitcnt lgkmcnt(0)")
    ep.e(f"v_or3_b32 v{FL}, v{FL}, v{FL+1}, v{FL+2}")
    ep.e(f"v_or_b32 v{FL}, v{FL}, v{FL+3}")
    ep.e("s_nop 0")
    ep.e(f"v_readfirstlane_b32 s52, v{FL}")
    ep.e("s_nop 3")
    ep.e(f"s_andn2_b32 s52, s52, s{S_FB}")
    ep.e("s_cmp_lg_u32 s52, 0")
    ep.e("s_cbranch_scc1 K1_FB")
    ep.e("K1_END:")
    ep.e("s_endpgm")

    fb = Seq()
    fb.e("K1_FB:")
    fb.e(f"s_mov_b32 s{S_FB}, -1")
    fb.e("s_waitcnt vmcnt(0)")
    for r in range(16): fb.e(f"v_mov_b32 v{NM+r}, 0xff800000")
    fb.e(f"s_mov_b32 s{S_K0}, 0")
    fb.e(f"s_mov_b32 s{S_K1}, 4096")
    fb.e("s_mov_b32 s52, 0")
    def lin_kv(z, isk, slot):
        for j in range(8):
            if j % 4 == 0:
                z.e(m0_set(slot * SLOT + (j >> 2) * 4096)); z.e("s_nop 0")
            z.e(k_dma(j) if isk else v_dma(j))
        r0 = S_K0 if isk else S_V0
        z.e(f"s_add_u32 s{r0}, s{r0}, {SLOT}")
        z.e(f"s_add_u32 s{r0+1}, s{r0+1}, {SLOT}")
    fl = Seq()
    fl.e("K1_FBT:")
    fl.e("s_barrier")
    lin_kv(fl, True, 0)
    fl.e("s_waitcnt vmcnt(0)")
    fl.e("s_barrier")
    fl.e("s_mov_b32 s53, 0")
    fi = Seq()
    fi.e("K1_FBI:")
    for t in range(4): fi.e(k_read(0, 0, t))
    for t in range(4): fi.e(f"v_add_u32 v{KA+t}, 4096, v{KA+t}")
    fi.e("s_waitcnt lgkmcnt(0)")
    for qt in range(4):
        for t in range(4): fi.e(qk_mfma(0, qt, t, czero=True))
    fi.e("s_nop 7")
    for r in range(16): fi.e(f"v_max_f32 v{NM+r}, v{NM+r}, v{SR+r}")
    fi.e("s_add_u32 s53, s53, 1")
    fi.e("s_cmp_lt_u32 s53, 8")
    fi.e("s_cbranch_scc1 K1_FBI")
    fo = Seq()
    for t in range(4): fo.e(f"v_subrev_u32 v{KA+t}, {SLOT}, v{KA+t}")
    fo.e("s_add_u32 s52, s52, 1")
    fo.e("s_cmp_lt_u32 s52, 16")
    fo.e("s_cbranch_scc1 K1_FBT")
    fz = Seq()
    for qt in range(4):
        r = NM + 4 * qt
        fz.e(f"v_max3_f32 v{T+qt}, v{r}, v{r+1}, v{r+2}")
        fz.e(f"v_max_f32 v{T+qt}, v{T+qt}, v{r+3}")
    for sw in ("v_permlane16_swap_b32", "v_permlane32_swap_b32"):
        for qt in range(4): fz.e(f"v_mov_b32 v{T+4+qt}, v{T+qt}")
        for qt in range(4): fz.e(f"{sw} v{T+qt}, v{T+4+qt}")
        for qt in range(4): fz.e(f"v_max_f32 v{T+qt}, v{T+qt}, v{T+4+qt}")
    for qt in range(4):
        for r in range(4): fz.e(f"v_sub_f32 v{NM+4*qt+r}, 0, v{T+qt}")
    for r in range(128): fz.e(f"v_accvgpr_write_b32 {a(r)}, 0")
    fz.e(f"s_mov_b32 s{S_K0}, 0")
    fz.e(f"s_mov_b32 s{S_K1}, 4096")
    fz.e(f"s_mov_b32 s{S_V0}, 0")
    fz.e(f"s_mov_b32 s{S_V1}, 4096")
    fz.e("s_barrier")
    lin_kv(fz, True, 0); lin_kv(fz, True, 1); lin_kv(fz, False, 2)
    fz.e("s_waitcnt vmcnt(0)")
    fz.e("s_barrier")
    for t in range(4): fz.e(k_read(0, 0, t))
    fz.e("s_branch K1_QK0")

    L = list
    main = L(q) + L(e0) + L(mx) + L(e1) + L(b0) + L(b1) + L(b0) + L(b1) + L(b0) + L(ep)
    fbt = (L(e0) + L(mx) + L(e1) + L(b0) + L(ep) + L(fb) + L(fl) + L(fi) + L(fi) + L(fo) + L(fl) + L(fi) + L(fo) + L(fz)
           + L(e0) + L(e1) + L(b0) + L(b1))
    resolve_waits([main, fbt])
    errs = validate(main, "k1") + validate(fbt, "k1fb")
    text = "".join(z.text() for z in (q, e0, mx, e1, b0, b1, ep, fb, fl, fi, fo, fz))
    return text, errs, dict(vgpr=256, agpr=256, lds=5 * SLOT, grid=256, block=256, info=info)


if __name__ == "__main__":
    t, e, m = gen_k1()
    print(len(t.splitlines()), m)
    for x in e[:40]: print("  ", x)
```

```python
from asmlib import *

MB = 1 << 20
WS_XNF = 0
WS_R = 2 * MB
WS_KEY = 2 * MB + 16384
WS_YP = 2 * MB + 65536
WS_WOF = 4 * MB
WS_OF = 8 * MB
NFF = 172
LOG2E = 0x3fb8aa3b

K_X, K_K, K_V, K_WQ, K_WO, K_WR, K_WG, K_WU, K_WD, K_OUT, K_DBG, K_WS = 0, 8, 16, 24, 32, 48, 56, 64, 72, 80, 88, 96


def allreduce(q, regs, tmp, op="v_add_f32"):
    n = len(regs)
    def pad(k):
        if n <= k: q.e(f"s_nop {k - n + 1}") if k - n + 1 >= 0 else None
    for mod in ("quad_perm:[1,0,3,2]", "quad_perm:[2,3,0,1]", "row_half_mirror", "row_mirror"):
        if n < 3: q.e(f"s_nop {2 - n}")
        for r in regs:
            q.e(f"{op}_dpp {v(r)}, {v(r)}, {v(r)} {mod} row_mask:0xf bank_mask:0xf")
    for sw in ("v_permlane16_swap_b32", "v_permlane32_swap_b32"):
        for r, t in zip(regs, tmp):
            q.e(f"v_mov_b32 {v(t)}, {v(r)}")
        if n < 3: q.e(f"s_nop {2 - n + 0}")
        for r, t in zip(regs, tmp):
            q.e(f"{sw} {v(r)}, {v(t)}")
        if n < 2: q.e("s_nop 0")
        for r, t in zip(regs, tmp):
            q.e(f"{op} {v(r)}, {v(r)}, {v(t)}")


def rnd_bf16(q, dst, src):
    q.e(f"v_cvt_pk_bf16_f32 {v(dst)}, {v(src)}, {v(src)}")
    q.e(f"v_lshlrev_b32 {v(dst)}, 16, {v(dst)}")


def unpack(q, dst, src, n):
    for i in range(n):
        q.e(f"v_lshlrev_b32 {v(dst + 2 * i)}, 16, {v(src + i)}")
        q.e(f"v_and_b32 {v(dst + 2 * i + 1)}, 0xffff0000, {v(src + i)}")


def gen_k0():
    q = Seq()
    q.e("s_cmp_ge_u32 s2, 256")
    q.e("s_cbranch_scc1 K0_END")
    q.e(f"s_load_dwordx2 s[4:5], s[0:1], {K_WS}")
    q.e("s_cmp_ge_u32 s2, 128")
    q.e("s_cbranch_scc1 K0_WO")
    ln = Seq()
    ln.e(f"s_load_dwordx2 s[6:7], s[0:1], {K_X}")
    ln.e(f"s_load_dwordx2 s[8:9], s[0:1], {K_WR}")
    ln.e("v_lshlrev_b32 v1, 4, v0")
    ln.e("v_and_b32 v2, 63, v0")
    ln.e("v_lshlrev_b32 v3, 4, v2")
    ln.e("s_lshl_b32 s3, s2, 14")
    ln.e("s_waitcnt lgkmcnt(0)")
    stamp(ln, 0, 0, vt=36)
    srd(ln, 12, 6, 2 * MB)
    srd(ln, 16, 8, 1024)
    srd(ln, 20, 4, 4 * MB)
    lx = ln.e("buffer_load_dwordx4 v[4:7], v1, s[12:15], s3 offen")
    lw = ln.e("buffer_load_dwordx4 v[8:11], v3, s[16:19], 0 offen")
    ln.e("v_lshrrev_b32 v12, 6, v0")
    ln.e("v_lshlrev_b32 v13, 8, v2")
    ln.e("v_lshl_add_u32 v13, v12, 4, v13")
    ln.e("s_lshl_b32 s10, s2, 4")
    ln.e("v_add_u32 v14, s10, v12")
    ln.e(wait(vm=[lx]))
    unpack(ln, 16, 4, 4)
    ln.e("v_add_f32 v24, v16, v17")
    ln.e("v_add_f32 v25, v18, v19")
    ln.e("v_add_f32 v26, v20, v21")
    ln.e("v_add_f32 v27, v22, v23")
    ln.e("v_add_f32 v24, v24, v25")
    ln.e("v_add_f32 v26, v26, v27")
    ln.e("v_add_f32 v24, v24, v26")
    allreduce(ln, [24], [25])
    ln.e("v_mul_f32 v24, 0x3b000000, v24")
    for i in range(8):
        ln.e(f"v_sub_f32 v{28+i}, v{16+i}, v24")
    ln.e("v_mul_f32 v26, v28, v28")
    ln.e("v_mul_f32 v27, v29, v29")
    for i in range(2, 8, 2):
        ln.e(f"v_fmac_f32 v26, v{28+i}, v{28+i}")
        ln.e(f"v_fmac_f32 v27, v{29+i}, v{29+i}")
    ln.e("v_add_f32 v26, v26, v27")
    allreduce(ln, [26], [25])
    ln.e("v_mul_f32 v26, 0x3b000000, v26")
    rnd_bf16(ln, 24, 24)
    rnd_bf16(ln, 26, 26)
    ln.e("v_add_f32 v26, 0x3727c5ac, v26")
    rnd_bf16(ln, 26, 26)
    ln.e("v_sqrt_f32 v26, v26")
    ln.e("s_nop 0")
    rnd_bf16(ln, 26, 26)
    ln.e("v_rcp_f32 v26, v26")
    for i in range(8):
        ln.e(f"v_sub_f32 v{28+i}, v{16+i}, v24")
    for i in range(4):
        ln.e(f"v_cvt_pk_bf16_f32 v{4+i}, v{28+2*i}, v{29+2*i}")
    unpack(ln, 16, 4, 4)
    for i in range(8):
        ln.e(f"v_mul_f32 v{16+i}, v{16+i}, v26")
    for i in range(4):
        ln.e(f"v_cvt_pk_bf16_f32 v{4+i}, v{16+2*i}, v{17+2*i}")
    ln.e("buffer_store_dwordx4 v[4:7], v13, s[20:23], s3 offen")
    unpack(ln, 16, 4, 4)
    ln.e(wait(vm=[lw]))
    unpack(ln, 28, 8, 4)
    ln.e("v_mul_f32 v24, v16, v28")
    ln.e("v_mul_f32 v25, v17, v29")
    for i in range(2, 8, 2):
        ln.e(f"v_fmac_f32 v24, v{16+i}, v{28+i}")
        ln.e(f"v_fmac_f32 v25, v{17+i}, v{29+i}")
    ln.e("v_add_f32 v24, v24, v25")
    allreduce(ln, [24], [25])
    rnd_bf16(ln, 24, 24)
    ln.e("v_ashrrev_i32 v25, 31, v24")
    ln.e("v_or_b32 v25, 0x80000000, v25")
    ln.e("v_xor_b32 v24, v24, v25")
    ln.e("v_and_b32 v24, 0xffff0000, v24")
    ln.e("v_sub_u32 v25, 0xffff, v14")
    ln.e("v_or_b32 v24, v24, v25")
    ln.e("v_lshlrev_b32 v14, 2, v14")
    ln.e(f"s_mov_b32 s11, {WS_R}")
    ln.e("v_cmp_eq_u32 vcc, 0, v2")
    ln.e("s_nop 4")
    ln.e("s_and_saveexec_b64 s[24:25], vcc")
    ln.e("buffer_store_dword v24, v14, s[20:23], s11 offen")
    if STAMP["on"]: ln.e("s_waitcnt vmcnt(0)")
    stamp(ln, 0, 1, vt=36)
    ln.e("s_endpgm")
    wo = Seq()
    wo.e("K0_WO:")
    wo.e(f"s_load_dwordx2 s[6:7], s[0:1], {K_WO}")
    wo.e("s_sub_u32 s3, s2, 128")
    wo.e("v_lshlrev_b32 v1, 4, v0")
    wo.e("s_lshl_b32 s10, s3, 15")
    wo.e("s_add_u32 s11, s10, 16384")
    wo.e("s_waitcnt lgkmcnt(0)")
    stamp(wo, 0, 0, vt=36)
    srd(wo, 12, 6, 4 * MB)
    srd(wo, 20, 4, 4 * MB, off=WS_WOF)
    l0 = wo.e("buffer_load_dwordx4 v[4:7], v1, s[12:15], s10 offen")
    l1 = wo.e("buffer_load_dwordx4 v[8:11], v1, s[12:15], s11 offen")
    wo.e("v_lshrrev_b32 v12, 6, v0")
    wo.e("v_and_b32 v2, 63, v0")
    wo.e("v_mul_u32_u24 v13, 1040, v12")
    wo.e("v_lshl_add_u32 v13, v2, 4, v13")
    wo.e("v_lshrrev_b32 v14, 2, v2")
    wo.e("v_mul_u32_u24 v14, 1040, v14")
    wo.e("v_and_b32 v15, 3, v2")
    wo.e("v_lshl_add_u32 v14, v15, 5, v14")
    wo.e("v_lshrrev_b32 v15, 1, v12")
    wo.e("v_lshl_add_u32 v14, v15, 7, v14")
    wo.e("v_and_b32 v16, 1, v12")
    wo.e("v_lshl_add_u32 v14, v16, 4, v14")
    wo.e("v_lshlrev_b32 v17, 19, v15")
    wo.e("v_lshl_add_u32 v17, v16, 11, v17")
    wo.e("v_lshl_add_u32 v17, v2, 4, v17")
    wo.e("s_lshl_b32 s10, s3, 12")
    wo.e(wait(vm=[l0]))
    wo.e("ds_write_b128 v13, v[4:7]")
    wo.e(wait(vm=[l1]))
    wo.e(f"ds_write_b128 v13, v[8:11] offset:{16*1040}")
    wo.e("s_waitcnt lgkmcnt(0)")
    wo.e("s_barrier")
    wo.e("ds_read_b64_tr_b16 v[20:21], v14")
    wo.e(f"ds_read_b64_tr_b16 v[22:23], v14 offset:{16*1040}")
    wo.e("ds_read_b64_tr_b16 v[24:25], v14 offset:8")
    wo.e(f"ds_read_b64_tr_b16 v[26:27], v14 offset:{16*1040+8}")
    wo.e("s_waitcnt lgkmcnt(2)")
    wo.e("buffer_store_dwordx4 v[20:23], v17, s[20:23], s10 offen")
    wo.e("s_waitcnt lgkmcnt(0)")
    wo.e("buffer_store_dwordx4 v[24:27], v17, s[20:23], s10 offen offset:1024")
    if STAMP["on"]: wo.e("s_waitcnt vmcnt(0)")
    stamp(wo, 0, 2, vt=36)
    wo.e("K0_END:")
    wo.e("s_endpgm")
    tr1 = list(q) + list(ln); tr2 = list(q) + list(wo)
    resolve_waits([tr1, tr2])
    errs = validate(tr1, "k0ln") + validate(tr2, "k0wo")
    return q.text() + ln.text() + wo.text(), errs, dict(vgpr=40, lds=32 * 1040, grid=256, block=1024)


def silu_bf16(q, dst, src, tmp, n):
    for i in range(n):
        q.e(f"v_mul_f32 {v(tmp+i)}, s40, {v(src+i)}")
    for i in range(n):
        q.e(f"v_exp_f32 {v(tmp+i)}, {v(tmp+i)}")
    if n == 1: q.e("s_nop 0")
    for i in range(n):
        q.e(f"v_add_f32 {v(tmp+i)}, 1.0, {v(tmp+i)}")
    for i in range(n):
        q.e(f"v_rcp_f32 {v(tmp+i)}, {v(tmp+i)}")
    if n == 1: q.e("s_nop 0")
    for i in range(n):
        q.e(f"v_mul_f32 {v(tmp+i)}, {v(tmp+i)}, {v(src+i)}")
    for i in range(n):
        rnd_bf16(q, dst + i, tmp + i)


def gen_kf():
    q = Seq()
    q.e(f"s_cmp_ge_u32 s2, {NFF}")
    q.e("s_cbranch_scc1 KF_END")
    q.e(f"s_load_dwordx2 s[4:5], s[0:1], {K_WS}")
    q.e(f"s_load_dwordx2 s[6:7], s[0:1], {K_WG}")
    q.e(f"s_load_dwordx2 s[8:9], s[0:1], {K_WU}")
    q.e(f"s_load_dwordx2 s[10:11], s[0:1], {K_WD}")
    q.e("v_lshlrev_b32 v1, 4, v0")
    q.e("v_mul_u32_u24 v2, 2752, v0")
    q.e("s_lshl_b32 s3, s2, 4")
    q.e("s_lshl_b32 s30, s2, 13")
    q.e(f"s_mov_b32 s31, {WS_R}")
    q.e(f"s_mov_b32 s32, {WS_R + 4096}")
    q.e(f"s_mov_b32 s40, {LOG2E | 0x80000000}")
    q.e("s_waitcnt lgkmcnt(0)")
    stamp(q, 1, 0, vt=156)
    srd(q, 12, 4, 4 * MB)
    srd(q, 16, 6, 512 * 2752)
    srd(q, 20, 8, 512 * 2752)
    srd(q, 24, 10, 1376 * 1024)
    lr = []
    for i in range(8):
        lr.append(q.e(f"buffer_load_dwordx4 {v(8+4*i,4)}, v1, s[12:15], s{31 + i//4} offen offset:{(i%4)*1024}"))
    lg = []
    for i in range(8):
        lg.append(q.e(f"buffer_load_dwordx4 {v(40+4*i,4)}, v2, s[16:19], s3 offen"))
        lg.append(q.e(f"buffer_load_dwordx4 {v(72+4*i,4)}, v2, s[20:23], s3 offen"))
        if i < 7: q.e(f"s_add_u32 s3, s3, {64*2752}")
    ld = []
    for i in range(8):
        if i == 4: q.e("s_add_u32 s30, s30, 4096")
        ld.append(q.e(f"buffer_load_dwordx4 {v(104+4*i,4)}, v1, s[24:27], s30 offen offset:{(i%4)*1024}"))
    q.e(wait(vm=lr))
    for i in range(8, 40, 4):
        q.e(f"v_max3_u32 v{i}, v{i}, v{i+1}, v{i+2}")
    q.e("v_max3_u32 v8, v8, v11, v12")
    q.e("v_max3_u32 v16, v16, v15, v19")
    q.e("v_max3_u32 v20, v20, v23, v24")
    q.e("v_max3_u32 v28, v28, v27, v31")
    q.e("v_max3_u32 v32, v32, v35, v36")
    q.e("v_max3_u32 v8, v8, v39, v16")
    q.e("v_max3_u32 v20, v20, v28, v32")
    q.e("v_max_u32 v8, v8, v20")
    allreduce(q, [8], [9], op="v_max_u32")
    q.e("s_nop 0")
    q.e("v_readfirstlane_b32 s33, v8")
    q.e("s_nop 3")
    q.e("s_and_b32 s34, s33, 0xffff")
    q.e("s_sub_u32 s34, 0xffff, s34")
    q.e("s_lshr_b32 s35, s34, 4")
    q.e("s_lshl_b32 s35, s35, 14")
    q.e("s_and_b32 s36, s34, 15")
    q.e("s_lshl_b32 s36, s36, 4")
    q.e("s_add_u32 s35, s35, s36")
    q.e("v_lshrrev_b32 v3, 3, v0")
    q.e("v_lshlrev_b32 v3, 8, v3")
    q.e("v_and_b32 v4, 7, v0")
    q.e("v_lshl_add_u32 v3, v4, 1, v3")
    lx = []
    for i in range(8):
        if i: q.e("s_add_u32 s35, s35, 2048")
        lx.append(q.e(f"buffer_load_ushort v{10+i}, v3, s[12:15], s35 offen"))
    q.e("s_cmp_lg_u32 s2, 0")
    q.e("s_cbranch_scc1 KF_NOKEY")
    q.e(f"v_mov_b32 v5, {WS_KEY}")
    stk = q.e("buffer_store_dword v8, v5, s[12:15], 0 offen")
    q.e("KF_NOKEY:")
    q.e("s_waitcnt vmcnt(0)")
    for i in range(8):
        q.e(f"v_lshlrev_b32 v{10+i}, 16, v{10+i}")
    for i in range(8):
        for (src, acc) in ((40 + 4 * i, 140), (72 + 4 * i, 148)):
            unpack(q, 20, src, 4)
            for e in range(8):
                if i == 0: q.e(f"v_mul_f32 v{acc+e}, v{20+e}, v10")
                else: q.e(f"v_fmac_f32 v{acc+e}, v{20+e}, v{10+i}")
    allreduce(q, list(range(140, 156)), list(range(20, 36)))
    for e in range(16):
        rnd_bf16(q, 140 + e, 140 + e)
    silu_bf16(q, 140, 140, 20, 8)
    for e in range(8):
        q.e(f"v_mul_f32 v{140+e}, v{140+e}, v{148+e}")
    for e in range(8):
        rnd_bf16(q, 140 + e, 140 + e)
    for j in range(8):
        unpack(q, 20, 104 + 4 * j, 4)
        for e in range(8):
            if j == 0: q.e(f"v_mul_f32 v{32+e}, v{20+e}, v140")
            else: q.e(f"v_fmac_f32 v{32+e}, v{20+e}, v{140+j}")
    q.e("v_lshlrev_b32 v1, 5, v0")
    q.e("s_lshl_b32 s30, s2, 11")
    q.e(f"s_add_u32 s30, s30, {WS_YP}")
    q.e("buffer_store_dwordx4 v[32:35], v1, s[12:15], s30 offen")
    q.e("buffer_store_dwordx4 v[36:39], v1, s[12:15], s30 offen offset:16")
    if STAMP["on"]: q.e("s_waitcnt vmcnt(0)")
    stamp(q, 1, 1, vt=156)
    q.e("KF_END:")
    q.e("s_endpgm")
    resolve_waits([q])
    errs = validate(q, "kf")
    return q.text(), errs, dict(vgpr=160, lds=0, grid=NFF, block=64)


def gen_k2(depth=5):
    ACC = 32
    RING = 96
    NV = RING + 32 * depth
    assert NV <= 256
    TMP = ACC
    LDS_Y = 65536
    q = Seq()
    q.e("s_cmp_ge_u32 s2, 256")
    q.e("s_cbranch_scc1 K2_END")
    q.e(f"s_load_dwordx2 s[4:5], s[0:1], {K_WS}")
    q.e(f"s_load_dwordx2 s[6:7], s[0:1], {K_X}")
    q.e(f"s_load_dwordx2 s[8:9], s[0:1], {K_OUT}")
    q.e("v_lshrrev_b32 v1, 6, v0")
    q.e("v_and_b32 v2, 63, v0")
    q.e("v_readfirstlane_b32 s3, v1")
    q.e("s_and_b32 s30, s2, 7")
    q.e("s_lshl_b32 s30, s30, 2")
    q.e("s_bfe_u32 s31, s2, 0x20003")
    q.e("s_add_u32 s30, s30, s31")
    q.e("s_lshr_b32 s31, s2, 5")
    q.e(f"s_mov_b32 s40, {LOG2E | 0x80000000}")
    q.e("s_waitcnt lgkmcnt(0)")
    q.e(f"s_mov_b32 s34, {WS_KEY}")
    q.e("s_load_dword s33, s[4:5], s34")
    srd(q, 12, 4, 4 * MB)
    q.e("s_cmp_eq_u32 s3, 4")
    q.e("s_cbranch_scc1 K2_Y")
    g = Seq()
    stamp(g, 3, 0, vt=12)
    g.e("s_lshl_b32 s34, s30, 19")
    g.e(f"s_add_u32 s34, s34, {WS_OF}")
    srd(g, 16, 4, 524288, off="s34")
    g.e("s_lshl_b32 s34, s31, 19")
    g.e(f"s_add_u32 s34, s34, {WS_WOF}")
    srd(g, 20, 4, 524288, off="s34")
    srd(g, 24, 6, 2 * MB)
    srd(g, 44, 8, 2 * MB)
    g.e("v_lshlrev_b32 v3, 4, v2")
    g.e("s_lshl_b32 s34, s3, 15")
    g.e("v_add_u32 v4, s34, v3")
    for t in range(1, 4):
        g.e(f"v_add_u32 v{4+t}, {t*131072}, v4")
    g.e("s_lshl_b32 s34, s3, 17")
    g.e("v_add_u32 v8, s34, v3")
    loads = {}
    def issue(i):
        st = RING + 32 * (i % depth)
        g.e(f"s_mov_b32 s36, {i*4096}")
        if i % 4 == 0: g.e(f"s_mov_b32 s37, {i*1024}")
        ls = []
        for t in range(4):
            ls.append(g.e(f"buffer_load_dwordx4 {v(st+4*t,4)}, v8, s[20:23], s36 offen offset:{t*1024}"))
            ls.append(g.e(f"buffer_load_dwordx4 {v(st+16+4*t,4)}, v{4+t}, s[16:19], s37 offen offset:{(i%4)*1024}"))
        loads[i] = ls
    issue(0)
    g.e("v_and_b32 v9, 15, v2")
    g.e("v_lshrrev_b32 v10, 4, v2")
    g.e("s_lshl_b32 s34, s30, 2")
    g.e("s_add_u32 s34, s34, s3")
    g.e("v_lshlrev_b32 v11, 10, v9")
    g.e("v_lshl_add_u32 v11, v10, 5, v11")
    g.e("s_lshl_b32 s35, s34, 14")
    g.e("s_lshl_b32 s38, s31, 7")
    g.e("s_add_u32 s38, s38, s35")
    g.e("v_lshlrev_b32 v12, 9, v10")
    g.e("v_lshl_add_u32 v12, v9, 4, v12")
    g.e("s_lshl_b32 s39, s31, 11")
    g.e("s_add_u32 s39, s39, s35")
    XN = ACC + 32
    def load_xn(z):
        return [z.e(f"buffer_load_dwordx4 {v(XN,4)}, v12, s[12:15], s39 offen"),
                z.e(f"buffer_load_dwordx4 {v(XN+4,4)}, v12, s[12:15], s39 offen offset:256")]
    def gate_pack(z):
        silu_bf16(z, TMP, TMP, TMP + 16, 16)
        for e in range(8):
            z.e(f"v_perm_b32 v{24+e}, {v(TMP+2*e+1)}, {v(TMP+2*e)}, s41")
    g.e("s_mov_b32 s41, 0x07060302")
    ln = load_xn(g)
    lx = [g.e("buffer_load_dwordx4 v[16:19], v11, s[24:27], s38 offen"),
          g.e("buffer_load_dwordx4 v[20:23], v11, s[24:27], s38 offen offset:16")]
    for i in range(1, depth):
        issue(i)
    g.e(wait(vm=ln, lgn=0))
    unpack(g, TMP, XN, 8)
    gate_pack(g)
    g.e(wait(vm=loads[0]))
    stamp(g, 3, 1, vt=TMP)
    for i in range(32):
        st = RING + 32 * (i % depth)
        g.e(wait(vm=loads[i]))
        for nt in range(4):
            for qt in range(4):
                ac = v(ACC + 16 * qt + 4 * nt, 4)
                g.e(f"v_mfma_f32_16x16x32_bf16 {ac}, {v(st+4*nt,4)}, {v(st+16+4*qt,4)}, {ac if i else 0}")
        if i + depth < 32:
            issue(i + depth)
    stamp(g, 3, 2, vt=RING)
    g.e("s_lshl_b32 s34, s3, 12")
    g.e("v_add_u32 v13, s34, v3")
    g.e("s_lshl_b32 s34, s3, 14")
    g.e("v_add_u32 v14, s34, v3")
    g.e("s_nop 4")
    for qt in range(4):
        for nt in range(4):
            g.e(f"ds_write_b128 v13, {v(ACC+16*qt+4*nt,4)} offset:{qt*16384+nt*1024}")
        if qt == 2: g.e("s_waitcnt lgkmcnt(4)")
    g.e("s_waitcnt lgkmcnt(0)")
    g.e("s_barrier")
    for sw in range(4):
        for nt in range(4):
            g.e(f"ds_read_b128 {v(RING+16*sw+4*nt,4)}, v14 offset:{sw*4096+nt*1024}")
        if sw == 2: g.e("s_waitcnt lgkmcnt(4)")
    g.e("s_and_b32 s35, s33, 0xffff")
    g.e("s_sub_u32 s35, 0xffff, s35")
    g.e("s_lshr_b32 s36, s35, 4")
    g.e("s_lshl_b32 s34, s30, 2")
    g.e("s_add_u32 s34, s34, s3")
    g.e("s_cmp_lg_u32 s36, s34")
    g.e("s_cbranch_scc1 K2_NOPATCH")
    p = Seq()
    load_xn(p)
    p.e("v_lshlrev_b32 v15, 6, v10")
    p.e(f"v_add_u32 v15, {LDS_Y}, v15")
    for k in range(4):
        p.e(f"ds_read_b128 {v(TMP+16+4*k,4)}, v15 offset:{16*k}")
    p.e("s_and_b32 s35, s35, 15")
    p.e("v_cmp_eq_u32 vcc, s35, v9")
    p.e("s_waitcnt vmcnt(0) lgkmcnt(0)")
    unpack(p, TMP, XN, 8)
    for e in range(16):
        p.e(f"v_cndmask_b32 {v(TMP+16+e)}, 0, {v(TMP+16+e)}, vcc")
    for e in range(16):
        p.e(f"v_add_f32 {v(TMP+e)}, {v(TMP+e)}, {v(TMP+16+e)}")
    for e in range(16):
        rnd_bf16(p, TMP + e, TMP + e)
    gate_pack(p)
    h = Seq()
    h.e("K2_NOPATCH:")
    unpack(h, TMP, 24, 8)
    unpack(h, TMP + 16, 16, 8)
    h.e("s_waitcnt lgkmcnt(0)")
    for e in range(16):
        h.e(f"v_add_f32 {v(RING+e)}, {v(RING+e)}, {v(RING+16+e)}")
        h.e(f"v_add_f32 {v(RING+32+e)}, {v(RING+32+e)}, {v(RING+48+e)}")
    for e in range(16):
        h.e(f"v_add_f32 {v(RING+e)}, {v(RING+e)}, {v(RING+32+e)}")
    for e in range(16):
        rnd_bf16(h, RING + e, RING + e)
    for e in range(16):
        h.e(f"v_mul_f32 {v(RING+e)}, {v(RING+e)}, {v(TMP+e)}")
    for e in range(16):
        rnd_bf16(h, RING + e, RING + e)
    for e in range(16):
        h.e(f"v_add_f32 {v(RING+e)}, {v(RING+e)}, {v(TMP+16+e)}")
    for e in range(8):
        h.e(f"v_cvt_pk_bf16_f32 {v(16+e)}, {v(RING+2*e)}, {v(RING+2*e+1)}")
    h.e("buffer_store_dwordx4 v[16:19], v11, s[44:47], s38 offen")
    h.e("buffer_store_dwordx4 v[20:23], v11, s[44:47], s38 offen offset:16")
    if STAMP["on"]: h.e("s_waitcnt vmcnt(0)")
    stamp(h, 3, 3, vt=TMP)
    h.e("s_endpgm")
    y = Seq()
    y.e("K2_Y:")
    y.e("s_waitcnt lgkmcnt(0)")
    y.e("s_and_b32 s35, s33, 0xffff")
    y.e("s_sub_u32 s35, 0xffff, s35")
    y.e("s_lshr_b32 s36, s35, 6")
    y.e("s_cmp_lg_u32 s36, s30")
    y.e("s_cbranch_scc1 K2_END")
    y.e("v_lshrrev_b32 v3, 4, v2")
    y.e("v_and_b32 v4, 15, v2")
    y.e("v_lshlrev_b32 v5, 11, v3")
    y.e("v_lshl_add_u32 v5, v4, 4, v5")
    y.e("s_lshl_b32 s34, s31, 8")
    y.e(f"s_add_u32 s34, s34, {WS_YP}")
    ly = []
    for i in range(43):
        ly.append(y.e(f"buffer_load_dwordx4 {v(16+4*i,4)}, v5, s[12:15], s34 offen"))
        if i < 42: y.e("s_add_u32 s34, s34, 8192")
    y.e("s_and_b32 s36, s33, 0xffff0000")
    y.e("s_xor_b32 s37, s36, 0x80000000")
    y.e("s_xor_b32 s38, s36, 0xffff0000")
    y.e("s_bitcmp1_b32 s36, 31")
    y.e("s_cselect_b32 s36, s37, s38")
    y.e("v_mov_b32 v6, s36")
    y.e("v_mul_f32 v6, s40, v6")
    y.e("v_exp_f32 v6, v6")
    y.e("s_nop 0")
    y.e("v_add_f32 v6, 1.0, v6")
    y.e("v_rcp_f32 v6, v6")
    y.e("s_nop 0")
    rnd_bf16(y, 6, 6)
    for i in range(1, 43):
        if i in (1, 8, 16, 24, 32, 40): y.e(wait(vm=[ly[min(42, (i // 8) * 8 + 7)]]))
        for e in range(4):
            y.e(f"v_add_f32 v{16+e}, v{16+e}, v{16+4*i+e}")
    for sw in ("v_permlane16_swap_b32", "v_permlane32_swap_b32"):
        for e in range(4): y.e(f"v_mov_b32 v{20+e}, v{16+e}")
        for e in range(4): y.e(f"{sw} v{16+e}, v{20+e}")
        for e in range(4): y.e(f"v_add_f32 v{16+e}, v{16+e}, v{20+e}")
    for e in range(4): rnd_bf16(y, 16 + e, 16 + e)
    for e in range(4): y.e(f"v_mul_f32 v{16+e}, v{16+e}, v6")
    for e in range(4): rnd_bf16(y, 16 + e, 16 + e)
    y.e("v_lshlrev_b32 v4, 4, v4")
    y.e(f"v_add_u32 v4, {LDS_Y}, v4")
    y.e("ds_write_b128 v4, v[16:19]")
    y.e("s_waitcnt lgkmcnt(0)")
    y.e("s_barrier")
    y.e("K2_END:")
    y.e("s_endpgm")
    t1 = list(q) + list(g) + list(p) + list(h)
    t2 = list(q) + list(g) + list(h)
    t3 = list(q) + list(y)
    resolve_waits([t1, t2, t3])
    errs = validate(t1, "k2a") + validate(t2, "k2b") + validate(t3, "k2y")
    return q.text() + g.text() + p.text() + h.text() + y.text(), errs, dict(vgpr=NV, lds=65536 + 256, grid=256, block=320)
```

```python
from asmlib import *
from gen_small import allreduce, rnd_bf16, unpack, MB, LOG2E
from gen_k1 import (Sched, MF, P0, SR, NM, LM, ONES, LV, KA, VA, KD, VD, VL16, WF, QF, KF_, VF,
                    SRD_K, SRD_V, SRD_W, SRD_X, SRD_O, S_W, S_WB, S_K0, S_K1, S_V0, S_V1, S_CNT, S_FB, S_Q,
                    SLOT, C_SCALE, Preg, Sreg, Oreg, Qreg, Kf, Vf, qk_mfma, pv_mfma, sum_mfma, k_read, v_read,
                    exp_i, cvt_i, add_i, k_dma, v_dma, m0_set)
from gen_f import silu_list, masked, Chain
import math

WS_XN = 0
WS_ST = 2 * MB
WS_KEY = 2 * MB + 16384
WS_YP = 2 * MB + 65536
WS_ATT = 3 * MB
WS_SJ = 3 * MB + 131072
WS_EP = 3 * MB + 262144
WS_WOF = 4 * MB
WS_OF = 8 * MB
NFF = 172
NYP = 192
EP_STEP = 0x9E3779B1
EP_MIX = 0x5BD1E995
LA, LB, LC, LD, LE = 0, SLOT, 2 * SLOT, 3 * SLOT, 4 * SLOT
XSLOT = [LB, LC, LA]
G_OFF, U_OFF, D_OFF, H_OFF, UN_OFF = 0, 2048, 4096, 6144, 4096
KEYX = LE + 7168
FLG = LC + 4096
CSB = LD
S_WB4, S_UOFF = 6, 7
S_H, S_QBLK = 28, 29
S_NL2E = 36
SRD_L = 48
S_EP, S_EP2, S_KEYW, S_CH = 44, 45, 46, 47
A_X, A_K, A_V, A_WQ, A_WO, A_WR, A_WG, A_WU, A_WD, A_OUT, A_DBG = 60, 62, 64, 66, 68, 72, 74, 76, 78, 80, 82
M_W0L0 = 84
S_KEY, S_IDXO = 86, 87
M_LEFT = 64
S_SPIN, S_T = 66, 67
S_QB, S_WOOFF = 70, 71
S_XO0, S_XO1 = 72, 73
S_ATTP = 62
S_SJ = 63
SRD_J = SRD_X
SRD_F = SRD_V
S_JO, S_RO = S_K0, S_K1
WA, XA, XD, WD = 196, 200, 208, 212
STAT = 208
VA0 = 223
CSV = 128
XBUF = [("a", 192), ("v", 128), ("a", 224), ("v", 160)]
CSA = 128
SPIN_LIMIT = 200000
OD = KD


def od0_calc(dst, t0, t1):
    return [f"v_lshrrev_b32 v{t0}, 8, v{VL16}", f"v_and_b32 v{dst}, 0x70, v{VL16}", f"v_lshlrev_b32 v{t0}, 5, v{t0}",
            f"v_lshrrev_b32 v{t1}, 7, v{VL16}", f"v_xor_b32 v{dst}, v{dst}, v{t0}", f"v_lshl_add_u32 v{dst}, v{t1}, 10, v{dst}"]

def wrd_calc(dst, t0, t1, vl):
    return [f"v_lshrrev_b32 v{dst}, 6, v{vl}", f"v_bfe_u32 v{t0}, v{vl}, 7, 2", f"v_bfe_u32 v{t1}, v{vl}, 4, 2",
            f"v_lshlrev_b32 v{dst}, 7, v{dst}", f"v_lshl_add_u32 v{dst}, v{t0}, 5, v{dst}", f"v_lshl_add_u32 v{dst}, v{t1}, 3, v{dst}"]

def srd_grp(d, b, nbytes):
    return [I(f"s_mov_b32 s{d}, s{b}"), I(f"s_mov_b32 s{d+1}, s{b+1}"), I(f"s_mov_b32 s{d+2}, {nbytes}"),
            I(f"s_mov_b32 s{d+3}, 0x00020000")]
def srd_off(d, b, off, nbytes):
    return [I(f"s_add_u32 s{d}, s{b}, {off}"), I(f"s_addc_u32 s{d+1}, s{b+1}, 0"), I(f"s_mov_b32 s{d+2}, {nbytes}")]


def gen_h(nu=2, dma_pos=None, qko="snake", pvo="snake", xread=None, pace=5.0, nln=3, lnpace=48, stat_lag=60,
          depth=8, pf=3, epi_a=8, epi_pa=5, epi_pb=8, n1=16, n2=36, nleft=6, ecap=2, qcap=2, jw=4):
    q = Seq()
    q.e("s_cmp_ge_u32 s2, 256")
    q.e("s_cbranch_scc1 F_END")
    q.e("s_load_dwordx16 s[60:75], s[0:1], 0")
    q.e("s_load_dwordx8 s[76:83], s[0:1], 64")
    q.e("s_load_dwordx2 s[4:5], s[0:1], 96")
    q.e("v_lshrrev_b32 v1, 6, v0")
    q.e("v_and_b32 v2, 63, v0")
    q.e("s_getpc_b64 s[98:99]")
    q.e("F_PC0:")
    q.e(f"v_readfirstlane_b32 s{S_W}, v1")
    q.e(f"s_and_b32 s{S_H}, s2, 31")
    q.e(f"s_lshr_b32 s{S_QBLK}, s2, 5")
    if pf & 1:
        q.e("s_lshr_b32 s42, s2, 3")
        q.e("v_lshlrev_b32 v104, 7, v2")
        q.e("s_lshl_b32 s42, s42, 11")
        q.e("v_lshl_add_u32 v104, v1, 9, v104")
        q.e("v_add_u32 v104, s42, v104")
        q.e("v_min_u32 v104, F_FB-F_PC0-4, v104")
        q.e("s_mov_b64 exec, 15")
        q.e("global_load_dword v105, v104, s[98:99]")
        q.e("s_mov_b64 exec, -1")
    q.e("v_lshrrev_b32 v3, 4, v2")
    q.e("v_and_b32 v4, 15, v2")
    q.e(f"v_lshlrev_b32 v{VL16}, 4, v2")
    q.e("s_lshl_b32 s42, s2, 3")
    q.e(f"s_lshl_b32 s43, s{S_W}, 1")
    q.e("s_add_u32 s42, s42, s43")
    q.e("s_lshl_b32 s43, s42, 10")
    q.e(f"v_add_u32 v5, s43, v{VL16}")
    q.e("v_lshlrev_b32 v6, 2, v3")
    q.e("v_xor_b32 v6, v4, v6")
    q.e("v_lshlrev_b32 v6, 4, v6")
    q.e("v_lshl_add_u32 v7, v1, 4, v3")
    q.e(f"v_lshl_add_u32 v{WD}, v7, 13, v6")
    for k in range(1, 4): q.e(f"v_add_u32 v{WD+k}, {k*31744}, v{WD}")
    q.e("v_and_b32 v6, 7, v2")
    q.e("v_xor_b32 v6, v6, v3")
    q.e("v_lshlrev_b32 v6, 4, v6")
    q.e("v_lshrrev_b32 v7, 3, v2")
    q.e(f"v_lshl_add_u32 v{XD}, v7, 10, v6")
    q.e(f"v_xor_b32 v6, 64, v{XD}")
    q.e(f"v_add_u32 v{XD+1}, 7168, v6")
    q.e(f"v_add_u32 v{XD+2}, 14336, v{XD}")
    q.e(f"v_add_u32 v{XD+3}, 14336, v{XD+1}")
    q.e(f"s_lshl_b32 s{S_WB}, s{S_W}, 13")
    q.e(f"s_lshl_b32 s{S_WB4}, s{S_W}, 12")
    q.e(f"s_lshl_b32 s52, s{S_H}, 8")
    q.e(f"s_lshl_b32 s53, s{S_QBLK}, 2")
    q.e(f"s_add_u32 s53, s53, s{S_W}")
    q.e("s_lshl_b32 s54, s53, 16")
    q.e("s_waitcnt lgkmcnt(0)")
    stamp(q, 2, 0, vt=100)
    PK = [160, 164]; XF = [168, 176]; M_ = [184, 185]; T_ = [186, 187]; VR = [188, 189]; U_ = [190, 191]; WRA = 136
    lA = q.e(f"global_load_dwordx4 {v(PK[0],4)}, v5, s[{A_X}:{A_X+1}]")
    lB = q.e(f"global_load_dwordx4 {v(PK[1],4)}, v5, s[{A_X}:{A_X+1}] offset:1024")
    q.e(f"s_add_u32 s56, s4, {WS_EP}")
    q.e("s_addc_u32 s57, s5, 0")
    q.e(f"s_load_dword s{S_EP}, s[56:57], 0")
    q.e(f"s_add_u32 s{SRD_W}, s{A_WQ}, s52")
    q.e(f"s_addc_u32 s{SRD_W+1}, s{A_WQ+1}, 0")
    q.e(f"s_sub_u32 s{SRD_W+2}, {4*MB}, s52")
    q.e(f"s_mov_b32 s{SRD_W+3}, 0x00020000")

    def g_w(j):
        return ([I(f"s_mov_b32 s43, {j * 524288}"), I(f"s_add_u32 m0, s{S_WB4}, {LD + (j & 3) * 16384}")],
                [I(f"buffer_load_dwordx4 v{WD+k}, {s(SRD_W,4)}, s43 offen offset:{k*1024} lds") for k in range(4)])
    def g_x(j, hh):
        return ([I(f"s_mov_b32 s{S_XO0}, {j * 128 + hh * 32768}"), m0_set(XSLOT[j % 3] + hh * 4096)],
                [I(f"buffer_load_dwordx4 v{XD+k}, {s(SRD_X,4)}, s{S_XO0} offen offset:{k*1024} lds") for k in range(4)])
    def g_kv(isk, slot, hh):
        r0_ = (S_K0 if isk else S_V0) + hh
        return ([m0_set(slot * SLOT + hh * 4096)], [(k_dma if isk else v_dma)(4 * hh + k) for k in range(4)],
                [I(f"s_add_u32 s{r0_}, s{r0_}, {SLOT}")])
    grp = {}
    for j in range(8):
        grp[f"W{j}"] = g_w(j)
        for hh in range(2): grp[f"X{j}{'ab'[hh]}"] = g_x(j, hh)
    for nm, isk, slot in (("K0", True, 0), ("K1", True, 1), ("V0", False, 2)):
        for hh in range(2): grp[nm + "ab"[hh]] = g_kv(isk, slot, hh)
    order = []
    for j in range(8): order += [f"W{j}", f"X{j}a", f"X{j}b"]
    order += ["K0a", "K0b", "K1a", "K1b", "V0a", "V0b"]
    wq = {j: grp[f"W{j}"][1] for j in range(8)}
    xq = {j: grp[f"X{j}a"][1] + grp[f"X{j}b"][1] for j in range(8)}
    kv0 = grp["K0a"][1] + grp["K0b"][1]

    su = Seq()
    su.e(f"s_lshl_b32 s54, s{S_H}, 19")
    srd(su, SRD_K, A_K, 524288, off="s54")
    srd(su, SRD_V, A_V, 524288, off="s54")
    su.e("s_lshl_b32 s54, s53, 19")
    su.e(f"s_lshl_b32 s55, s{S_H}, 12")
    su.e("s_add_u32 s54, s54, s55")
    su.e(f"s_add_u32 s54, s54, {WS_OF}")
    srd(su, SRD_O, 4, 3 * 131072 + 4096, off="s54")
    srd(su, SRD_L, 4, 8 * MB)
    su.e(f"s_mov_b32 s{S_NL2E}, {LOG2E | 0x80000000}")
    su.e(f"s_mov_b32 s{S_FB}, 0")
    su.e(f"s_cmp_eq_u32 s{S_W}, 0")
    su.e(f"s_cselect_b64 s[{M_W0L0}:{M_W0L0+1}], 1, 0")
    su.e(f"s_mov_b32 s{S_SPIN}, 0")
    su.e(f"s_and_b32 s{S_QB}, s2, 7")
    su.e(f"s_lshl_b32 s{S_QB}, s{S_QB}, 2")
    su.e(f"s_add_u32 s{S_UOFF}, s{S_QB}, s{S_W}")
    su.e(f"s_lshl_b32 s{S_UOFF}, s{S_UOFF}, 15")
    su.e("s_bfe_u32 s54, s2, 0x20003")
    su.e(f"s_add_u32 s{S_QB}, s{S_QB}, s54")
    su.e("s_lshl_b32 s54, s54, 20")
    su.e(f"s_add_u32 s{S_UOFF}, s{S_UOFF}, s54")
    su.e(f"s_lshl_b32 s{S_WOOFF}, s{S_QBLK}, 7")
    su.e(f"s_add_u32 s{S_UOFF}, s{S_UOFF}, s{S_WOOFF}")
    su.e(f"s_lshl_b32 s54, s{S_W}, 20")
    su.e(f"s_add_u32 s{S_WOOFF}, s{S_WOOFF}, s54")
    su.e("s_add_u32 s100, s98, F_LAST-F_PC0")
    su.e("s_addc_u32 s101, s99, 0")
    su.e("v_xor_b32 v6, v3, v4")
    su.e("v_lshlrev_b32 v7, 8, v4")
    for t in range(4):
        su.e(f"v_add_u32 v{24+t}, {t}, v1")
        su.e(f"v_and_b32 v{24+t}, 3, v{24+t}")
        su.e(f"v_lshlrev_b32 v21, 2, v{24+t}")
        su.e("v_xor_b32 v21, v21, v6")
        su.e(f"v_lshl_add_u32 v{KA+t}, v21, 4, v7")
    su.e("v_lshlrev_b32 v7, 13, v1")
    su.e("v_lshl_add_u32 v7, v3, 8, v7")
    for j in range(4):
        su.e(f"v_add_u32 v20, {4*j}, v3")
        su.e("v_xor_b32 v20, v20, v4")
        su.e(f"v_lshl_add_u32 v{KD+j}, v20, 4, v7")
    for j in range(2):
        su.e(f"v_add_u32 v20, {4*j}, v3")
        su.e("v_lshlrev_b32 v20, 1, v20")
        su.e("v_xor_b32 v20, v20, v4")
        su.e(f"v_lshl_add_u32 v{VD+j}, v20, 4, v7")
    su.e("v_bfe_u32 v6, v2, 2, 2")
    su.e("v_and_b32 v20, 3, v2")
    su.e("v_lshl_add_u32 v7, v3, 3, v6")
    su.e("v_lshlrev_b32 v7, 8, v7")
    su.e("v_lshl_add_u32 v7, v20, 4, v7")
    su.e(f"v_add_u32 v7, {LD}, v7")
    for s_ in range(4):
        su.e(f"v_xor_b32 v20, v{24+s_}, v6")
        su.e(f"v_lshl_add_u32 v{WA+s_}, v20, 6, v7")
    su.e("v_lshrrev_b32 v6, 1, v4")
    su.e("v_xor_b32 v6, v6, v3")
    su.e("v_lshlrev_b32 v7, 13, v1")
    su.e("v_lshl_add_u32 v7, v4, 7, v7")
    su.e(f"v_lshl_add_u32 v{XA}, v6, 4, v7")
    su.e(f"v_xor_b32 v{XA+1}, 64, v{XA}")
    su.e(f"v_add_u32 v{XA+2}, 0x10000, v{XA}")
    su.e(f"v_add_u32 v{XA+3}, 0x10000, v{XA+1}")
    for r in range(4): su.e(f"v_mov_b32 v{ONES+r}, 0x3f803f80")
    su.e(f"s_mov_b32 s{S_K0}, 0")
    su.e(f"s_mov_b32 s{S_K1}, 4096")
    su.e(f"s_mov_b32 s{S_V0}, 0")
    su.e(f"s_mov_b32 s{S_V1}, 4096")
    su.e("s_lshr_b32 s57, s42, 6")
    su.e("s_lshl_b32 s57, s57, 9")
    su.e("s_and_b32 s54, s42, 15")
    su.e("s_lshl_b32 s54, s54, 5")
    su.e("s_add_u32 s57, s57, s54")
    su.e("s_bfe_u32 s54, s42, 0x20004")
    su.e("s_lshl_b32 s54, s54, 3")
    su.e("s_add_u32 s57, s57, s54")
    su.e(f"s_add_u32 s57, s57, {WS_ST}")
    su.e("s_lshl_b32 s56, s42, 10")
    su.e(f"s_lshl_b32 s{S_ATTP}, s53, 5")
    su.e(f"s_add_u32 s{S_ATTP}, s{S_ATTP}, s{S_H}")
    su.e(f"s_lshl_b32 s{S_ATTP}, s{S_ATTP}, 7")
    su.e(f"s_add_u32 s{S_ATTP}, s{S_ATTP}, {WS_ATT}")
    su.e(f"s_lshl_b32 s{S_SJ}, s2, 7")
    su.e(f"s_add_u32 s{S_SJ}, s{S_SJ}, {WS_SJ}")
    su.e(f"s_and_b32 s{S_CH}, s2, 7")
    su.e(f"s_mul_i32 s{S_CH}, s{S_CH}, 24")
    su.e("s_lshr_b32 s54, s2, 3")
    su.e(f"s_add_u32 s{S_CH}, s{S_CH}, s54")
    su.e("s_cmp_lt_u32 s54, 24")
    su.e(f"s_cselect_b32 s{S_CH}, s{S_CH}, {NFF}")
    su.e(f"s_min_u32 s{S_CH}, s{S_CH}, {NFF}")
    su.e("s_sub_u32 s58, 0xffff, s42")
    su.e("s_sub_u32 s59, s58, 1")

    def weave(dst, body, groups, step, first=0):
        items = []
        for g_ in groups:
            sc_, mem_ = grp[g_][0], grp[g_][1]
            for k, m_ in enumerate(mem_): items.append((sc_ if k == 0 else [], m_))
        t = 0; nxt = first; inmask = False
        for n_, ins in enumerate(body):
            carry = ins.op.startswith("s_addc") or ins.op.startswith("s_cselect")
            if items and t >= nxt and not inmask and not carry and not (dst and dst[-1].op.startswith("s_cmp")):
                sc_, m_ = items.pop(0)
                if sc_:
                    dst.e(sc_); dst.e(ins); dst.e(m_)
                    if ins.text.startswith("s_mov_b64 exec") or ins.kind == "wait" or ins.op in ("s_add_u32", "s_cmp_eq_u32"):
                        dst.pop(); dst.pop(); dst.e("s_nop 0"); dst.e(m_); dst.e(ins)
                else:
                    dst.e(m_); dst.e(ins)
                nxt = t + step
            else:
                dst.e(ins)
            if ins.text.startswith("s_mov_b64 exec"): inmask = not ins.text.endswith("-1")
            t += 4 * ins.nops * (2 if ins.kind == "trans" else 1)
        for sc_, m_ in items:
            if sc_: dst.e(sc_); dst.e("s_nop 0")
            dst.e(m_)

    q.e(grp["W0"][0]); q.e("s_nop 0"); q.e(grp["W0"][1])
    lW = q.e(f"global_load_dwordx4 {a(WRA,4)}, v{VL16}, s[{A_WR}:{A_WR+1}]")
    srd(q, SRD_X, A_X, 65536, off="s54")
    weave(q, su, ["X0a", "X0b"], 40)

    ln = Seq()
    def both(f):
        for k in range(2): ln.e(f(k))
    def rnd2(R):
        both(lambda k: f"v_cvt_pk_bf16_f32 v{R[k]}, v{R[k]}, v{R[k]}")
        both(lambda k: f"v_lshlrev_b32 v{R[k]}, 16, v{R[k]}")
    def unp2():
        for i in range(4):
            both(lambda k: f"v_lshlrev_b32 v{XF[k]+2*i}, 16, v{PK[k]+i}")
            both(lambda k: f"v_and_b32 v{XF[k]+2*i+1}, 0xffff0000, v{PK[k]+i}")
    unp2()
    both(lambda k: f"v_add_f32 v{M_[k]}, v{XF[k]}, v{XF[k]+1}")
    both(lambda k: f"v_add_f32 v{T_[k]}, v{XF[k]+2}, v{XF[k]+3}")
    both(lambda k: f"v_add_f32 v{VR[k]}, v{XF[k]+4}, v{XF[k]+5}")
    both(lambda k: f"v_add_f32 v{U_[k]}, v{XF[k]+6}, v{XF[k]+7}")
    both(lambda k: f"v_add_f32 v{M_[k]}, v{M_[k]}, v{T_[k]}")
    both(lambda k: f"v_add_f32 v{VR[k]}, v{VR[k]}, v{U_[k]}")
    both(lambda k: f"v_add_f32 v{M_[k]}, v{M_[k]}, v{VR[k]}")
    allreduce(ln, M_, T_)
    both(lambda k: f"v_mul_f32 v{M_[k]}, 0x3b000000, v{M_[k]}")
    DF = [32, 40]
    for i in range(8): both(lambda k: f"v_sub_f32 v{DF[k]+i}, v{XF[k]+i}, v{M_[k]}")
    both(lambda k: f"v_mul_f32 v{VR[k]}, v{DF[k]}, v{DF[k]}")
    both(lambda k: f"v_mul_f32 v{U_[k]}, v{DF[k]+1}, v{DF[k]+1}")
    for i in range(2, 8, 2):
        both(lambda k: f"v_fmac_f32 v{VR[k]}, v{DF[k]+i}, v{DF[k]+i}")
        both(lambda k: f"v_fmac_f32 v{U_[k]}, v{DF[k]+i+1}, v{DF[k]+i+1}")
    both(lambda k: f"v_add_f32 v{VR[k]}, v{VR[k]}, v{U_[k]}")
    rnd2(M_)
    allreduce(ln, VR, T_)
    both(lambda k: f"v_mul_f32 v{VR[k]}, 0x3b000000, v{VR[k]}")
    rnd2(VR)
    both(lambda k: f"v_add_f32 v{VR[k]}, 0x3727c5ac, v{VR[k]}")
    rnd2(VR)
    both(lambda k: f"v_sqrt_f32 v{VR[k]}, v{VR[k]}")
    ln.e("s_waitcnt lgkmcnt(0)")
    ln.e(f"s_add_u32 s{S_EP}, s{S_EP}, {hex(EP_STEP)}")
    ln.e(f"s_xor_b32 s{S_EP2}, s{S_EP}, {hex(EP_MIX)}")
    both(lambda k: f"v_lshrrev_b32 v{48+2*k}, 16, v{M_[k]}")
    rnd2(VR)
    both(lambda k: f"v_mov_b32 v{49+2*k}, s{S_EP}")
    both(lambda k: f"v_or_b32 v{48+2*k}, v{48+2*k}, v{VR[k]}")
    ln.e("s_mov_b64 exec, 1")
    ln.e(f"buffer_store_dwordx2 v[48:49], off, {s(SRD_L,4)}, s57 sc1")
    ln.e(f"buffer_store_dwordx2 v[50:51], off, {s(SRD_L,4)}, s57 offset:32 sc1")
    ln.e("s_mov_b64 exec, -1")
    ln1 = Seq([i_ for i_ in ln if i_.kind != "nop"])
    ln = Seq()
    both(lambda k: f"v_rcp_f32 v{VR[k]}, v{VR[k]}")
    for i in range(8): both(lambda k: f"v_sub_f32 v{XF[k]+i}, v{XF[k]+i}, v{M_[k]}")
    for i in range(4): both(lambda k: f"v_cvt_pk_bf16_f32 v{PK[k]+i}, v{XF[k]+2*i}, v{XF[k]+2*i+1}")
    unp2()
    for i in range(8): both(lambda k: f"v_mul_f32 v{XF[k]+i}, v{XF[k]+i}, v{VR[k]}")
    for i in range(4): both(lambda k: f"v_cvt_pk_bf16_f32 v{PK[k]+i}, v{XF[k]+2*i}, v{XF[k]+2*i+1}")
    ln.e(f"buffer_store_dwordx4 {v(PK[0],4)}, v{VL16}, {s(SRD_L,4)}, s56 offen sc1")
    ln.e(f"buffer_store_dwordx4 {v(PK[1],4)}, v{VL16}, {s(SRD_L,4)}, s56 offen offset:1024 sc1")
    for i in range(4): ln.e(f"v_accvgpr_read_b32 v{186+i}, {a(WRA+i)}")
    unp2()
    unpack(ln, PK[0], 186, 4)
    both(lambda k: f"v_mul_f32 v{M_[k]}, v{XF[k]}, v{PK[0]}")
    both(lambda k: f"v_mul_f32 v{U_[k]}, v{XF[k]+1}, v{PK[0]+1}")
    for i in range(2, 8, 2):
        both(lambda k: f"v_fmac_f32 v{M_[k]}, v{XF[k]+i}, v{PK[0]+i}")
        both(lambda k: f"v_fmac_f32 v{U_[k]}, v{XF[k]+i+1}, v{PK[0]+i+1}")
    both(lambda k: f"v_add_f32 v{M_[k]}, v{M_[k]}, v{U_[k]}")
    allreduce(ln, M_, T_)
    rnd2(M_)
    both(lambda k: f"v_ashrrev_i32 v{T_[k]}, 31, v{M_[k]}")
    both(lambda k: f"v_or_b32 v{T_[k]}, 0x80000000, v{T_[k]}")
    both(lambda k: f"v_xor_b32 v{M_[k]}, v{M_[k]}, v{T_[k]}")
    both(lambda k: f"v_and_b32 v{M_[k]}, 0xffff0000, v{M_[k]}")
    both(lambda k: f"v_or_b32 v{M_[k]}, s{58+k}, v{M_[k]}")
    ln.e(f"v_max_u32 v{M_[0]}, v{M_[0]}, v{M_[1]}")
    ln.e(f"v_readfirstlane_b32 s{S_KEYW}, v{M_[0]}")
    ln2 = [i_ for i_ in ln if i_.kind != "nop"]
    autonop(ln1)
    q.e(wait(vm=[lA, lB]))
    stamp(q, 2, 1, vt=100)
    lw = Seq()
    weave(lw, ln1, order[3:3 + nln], lnpace)
    lw = Seq([i_ for k, i_ in enumerate(lw) if i_.kind != "nop"])
    autonop(lw, q)
    q.extend(lw)
    stamp(q, 2, 2, vt=100)
    rest = order[3 + nln:]
    assert nln <= 7

    def xreg(j, qt, tt):
        p, b = XBUF[j & 3]
        return rng(p, b + (qt * 2 + tt) * 4, 4)
    def x_read(j, qt, tt):
        sl = XSLOT[j % 3]
        if sl == LC: return I(f"ds_read_b128 {xreg(j, qt, tt)}, v{XA+2+tt} offset:{qt*2048}")
        return I(f"ds_read_b128 {xreg(j, qt, tt)}, v{XA+tt} offset:{sl + qt*2048}")
    NB = 32
    def frags(n):
        if n < 24: return [(n >> 2, n & 3, p, tt) for p in range(2) for tt in range(2)]
        dt = n - 24
        return [(6 + (f >> 1), dt >> 1, dt & 1, f & 1) for f in range(4)]
    def w_read(dst, fr, x):
        j, s_, p, tt = fr
        return I(f"ds_read_b64_tr_b16 {dst}, v{WA+s_} offset:{(j & 3)*16384 + tt*8192 + x*1024 + 8*p}")
    def wreg(n, f): return WF + (n & 1) * 16 + 4 * f
    XTRA = 192
    mf = []; G = []; last = {}
    for n in range(NB):
        G.append(len(mf))
        fr = frags(n)
        if n < 24 and (n & 3) == 0:
            for f, (j, s_, p, tt) in enumerate(fr):
                d = a(CSA + 4 * p, 4)
                mf.append(I(f"{MF} {d}, {v(wreg(n, f), 4)}, {v(ONES, 4)}, {'0' if (j == 0 and tt == 0) else d}"))
        if n == 24:
            for f in range(4):
                d = a(CSA, 4); mf.append(I(f"{MF} {d}, {v(wreg(n, f), 4)}, {v(ONES, 4)}, {d}"))
            for f in range(4):
                d = a(CSA + 4, 4); mf.append(I(f"{MF} {d}, {a(XTRA + 4*f, 4)}, {v(ONES, 4)}, {d}"))
            gcs = len(mf) - 1
        if n < 24:
            order_ = [(p * 2 + tt, qt) for p in range(2) for qt in range(4) for tt in range(2)]
        else:
            order_ = [(f, qt) for qt in range(4) for f in range(4)]
        for f, qt in order_:
            j, s_, p, tt = fr[f]
            dt = 2 * s_ + p
            d = v((dt * 4 + qt) * 4, 4)
            mf.append(I(f"{MF} {d}, {v(wreg(n, f), 4)}, {xreg(j, qt, tt)}, {'0' if (j == 0 and tt == 0) else d}"))
            last[(dt, qt)] = len(mf) - 1
    G.append(len(mf))
    NM_ = len(mf)
    sch = Sched(NM_)
    q.e(wait(vm=wq[0] + xq[0] + [lW]))
    r0 = [q.e(x_read(0, qt, tt)) for qt in range(2) for tt in range(2)]
    q.e("s_barrier")
    for f in range(4):
        for x in range(2): q.e(w_read(v(wreg(0, f) + 2 * x, 2), frags(0)[f], x))
    q.e("s_waitcnt lgkmcnt(8)")
    for qt in range(2, 4):
        for tt in range(2): q.e(x_read(0, qt, tt))
    q.e("s_waitcnt lgkmcnt(0)")
    stamp(q, 2, 3, vt=160)
    forb = set()
    for n in range(NB):
        forb |= {G[n], G[n + 1] - 2, G[n + 1] - 1}
        if n + 1 < NB:
            for f in range(4):
                for x in range(2):
                    sch.put_mem(G[n] + 1 + 2 * f, w_read(v(wreg(n + 1, f) + 2 * x, 2), frags(n + 1)[f], x))
                forb.add(G[n] + 1 + 2 * f)
    for f in range(4):
        for x in range(2):
            sch.put_mem(G[23] + 9 + f, w_read(a(XTRA + 4 * f + 2 * x, 2), frags(25)[f], x))
        forb.add(G[23] + 9 + f)
    forb.add(G[23] + 8)
    if xread is None: xread = {1: 3, 2: 7, 3: 11, 4: 14, 5: 17, 6: 20, 7: 22}
    for j, n in xread.items():
        g0 = G[n + 1] - 8
        sch.put_sc(g0, wait(vm=xq[j], lgn=4), exact=True)
        k = 0
        for qt in range(4):
            for tt in range(2):
                sch.put_mem(g0 + 1 + (k >> 1), x_read(j, qt, tt)); k += 1
        forb |= {g0, g0 + 1, g0 + 2, g0 + 3, g0 + 4}
    CW = XA
    gw = gcs + 4
    while gw in forb: gw += 1
    gb = gw + 4
    csw = [I(f"ds_write_b128 v{CW}, {a(CSA+4*p,4)} offset:{16*p + 512*dup}") for p in range(2) for dup in range(2)]
    sch.put_mem(gw, [I("s_mov_b64 exec, s[54:55]")] + csw + [I("s_mov_b64 exec, -1")], cost=2)
    sch.put_sc(gb, wait(lg=csw), exact=True)
    sch.put_sc(gb + 1, [I("s_barrier")] + stamp1(1, 12, "a190"), exact=True)
    csr = []
    g_ = gb + 2
    for dt in range(8):
        i_ = I(f"ds_read_b128 {v(CSV+4*dt,4)}, v{CW} offset:{(dt>>1)*128 + (dt&1)*16}")
        csr.append(i_)
        g_ = sch.put_mem(g_, i_, exact=False)
    gcsr = g_
    forb |= set(range(gw, gcsr + 1))
    kr0 = [k_read(0, 0, t) for t in range(4)]
    for t in range(4): sch.put_mem(G[31] + 1 + 2 * (t >> 1), kr0[t])
    forb_sc = set()
    for n in range(NB): forb_sc |= {G[n + 1] - 2, G[n + 1] - 1}
    forb_sc |= {gw, gb, gb + 1, G[23] + 8}
    def p_sc(g, ins):
        while sch.mem[g] or sch.sc[g] or g in forb_sc: g += 1
        sch.put_sc(g, ins, exact=True); return g
    def p_mem(g, ins):
        while g in forb or sch.free(g) < 2 or sch.sc[g]: g += 1
        sch.put_mem(g, ins, cost=2); return g
    earliest = {}
    for j in range(4, 8): earliest[f"W{j}"] = G[4 * (j - 4) + 3]
    for j in range(4, 8):
        for h_ in "ab": earliest[f"X{j}{h_}"] = G[xread[j - 3] + 1]
    for nm, j in (("K0", 5), ("K1", 6), ("V0", 7)):
        for h_ in "ab": earliest[nm + h_] = G[xread[j] + 1]
    VPB = XA + 1
    stl = [I(f"buffer_load_dwordx4 {v(STAT,4)}, v{STAT+4}, {s(SRD_L,4)}, s42 offen sc1"),
           I(f"buffer_load_dwordx4 {v(STAT+4,4)}, v{STAT+4}, {s(SRD_L,4)}, s42 offen offset:16 sc1")]
    stat_addr = [f"v_and_b32 v{STAT+4}, 0xf0, v{VL16}", f"v_lshlrev_b32 v{STAT+4}, 1, v{STAT+4}"]
    stat_cmp = [f"v_cmp_eq_u32 {d}, s{S_EP}, v{STAT+1+2*k}" for k, d in enumerate(("s[56:57]", "s[58:59]", "s[72:73]", "vcc"))]
    stat_and = ["s_and_b64 s[56:57], s[56:57], s[58:59]", "s_and_b64 vcc, vcc, s[72:73]", "s_and_b64 vcc, vcc, s[56:57]"]
    tgt = 0.0; cur = 0
    pos = {}
    def paced(ins):
        nonlocal tgt, cur
        g = p_mem(max(int(math.ceil(tgt)), cur), ins)
        cur = g + 1; tgt = max(tgt + pace, g + 3)
        return g
    for nm in rest:
        gr = grp[nm]
        cur = max(cur, earliest.get(nm, 0))
        tgt = max(tgt, cur)
        for i_ in gr[0]: cur = p_sc(cur, i_) + 1
        for i_ in gr[1]: pos[nm] = paced(i_)
        if len(gr) > 2:
            for i_ in gr[2]: cur = p_sc(cur, i_) + 1
        if nm == "W7":
            g_ = sch.put_va(cur, I(stat_addr[0]))
            gsa = sch.put_va(g_, I(stat_addr[1]))
            g_ = p_sc(cur, I("s_lshl_b32 s42, s53, 9"))
            p_sc(g_ + 1, I(f"s_add_u32 s42, s42, {WS_ST}"))
        if nm == "X7b":
            assert gsa < cur
            for i_ in stl: pos["stat"] = paced(i_)
    ch = Chain(sch, G[xread[6] + 1])
    ch.put(f"v_bfe_u32 v{VA0}, v{VL16}, 1, 8")
    ch.put(f"v_lshrrev_b32 v{VPB}, 6, v{VL16}")
    ch.put(f"v_lshl_add_u32 v{VA0}, v{VPB}, 8, v{VA0}")
    ch.put(f"v_add_u32 v{VA0}, {LC}, v{VA0}")
    g_ = pos["stat"] + stat_lag
    while sch.sc[g_] or sch.mem[g_] or g_ in forb_sc or g_ in forb: g_ += 1
    sch.put_sc(g_, wait(vm=stl), exact=True)
    ch = Chain(sch, g_)
    for t_ in stat_cmp: ch.put(t_)
    g_ = p_sc(ch.g + 4, [I(x) for x in stat_and] + [I("s_cmp_eq_u64 vcc, -1"), I("s_cbranch_scc0 F_SPIN1"), I("F_BACK1:")])
    gchk = g_
    ch = Chain(sch, g_)
    for k in range(4): ch.put(f"v_and_b32 v{STAT+1+2*k}, 0xffff0000, v{STAT+2*k}")
    for k in range(4): ch.put(f"v_rcp_f32 v{STAT+1+2*k}, v{STAT+1+2*k}")
    for k in range(4): ch.put(f"v_lshlrev_b32 v{STAT+2*k}, 16, v{STAT+2*k}")
    for k in range(4): ch.put(f"v_mul_f32 v{STAT+1+2*k}, {hex(C_SCALE)}, v{STAT+1+2*k}")
    for k in range(4): ch.put(f"v_xor_b32 v{STAT+2*k}, 0x80000000, v{STAT+2*k}")
    gstat = ch.g
    ch = Chain(sch, 0)
    for i_ in ln2: ch.put(i_)
    gln = ch.g
    assert gln < G[xread[3] + 1] - 8, (gln, G)
    ch = Chain(sch, G[xread[6] + 1] + 2)
    ch.put(f"s_lshl_b32 s54, s{S_W}, 7")
    ch.put(f"s_add_u32 s54, s54, {CSB}")
    ch.put(f"v_lshrrev_b32 v{CW}, 8, v{VL16}")
    ch.put(f"v_lshl_add_u32 v{CW}, v{CW}, 5, s54")
    ch.put("s_mov_b32 s54, 0x00010001")
    ch.put("s_mov_b32 s55, 0x00010001")
    assert ch.g < gcs
    for n in range(NB - 1):
        e2 = G[n + 1] - 2
        if n < 24 and (n & 3) == 2:
            j = n >> 2
            need = list(wq[j + 1]) + (wq[7] if j == 5 else [])
            sch.put_sc(e2, stamp1(1, 2 * j, "a190") + [wait(vm=need, lgn=0)], exact=True)
            sch.put_sc(e2 + 1, [I("s_barrier")] + stamp1(1, 2 * j + 1, "a190"), exact=True)
        elif n == 30:
            sch.put_sc(e2, stamp1(1, 13, "a190") + [wait(vm=kv0, lgn=0)], exact=True)
            sch.put_sc(e2 + 1, [I("s_barrier")] + stamp1(1, 14, "a190"), exact=True)
        else:
            sch.put_sc(e2, wait(lgn=0), exact=True)
    sch.put_sc(G[23] + 8, I("s_waitcnt lgkmcnt(4)"), exact=True)
    for r in range(128):
        gz = sch.put_va(gln, I(f"v_accvgpr_write_b32 {a(r)}, 0"))
    for k in range(G[24], NM_): sch.cap[k] = qcap
    gready = max(sch.put_sc(gcsr + 4, wait(lg=csr)) + 1, gstat + 1)
    groups = []
    for dt in range(8):
        for qt in range(4):
            r = (dt * 4 + qt) * 4
            g0 = max(last[(dt, qt)] + 6, gready)
            d = Qreg(qt, dt >> 1) + 2 * (dt & 1)
            it = ([("fma", e, I(f"v_fma_f32 {v(r+e)}, {v(STAT+2*qt)}, {v(CSV+4*dt+e)}, {v(r+e)}")) for e in range(4)]
                  + [("mul", e, I(f"v_mul_f32 {v(r+e)}, {v(STAT+2*qt+1)}, {v(r+e)}")) for e in range(4)]
                  + [("o", 0, I(f"v_cvt_pk_bf16_f32 {v(r)}, {v(r)}, {v(r+1)}")),
                     ("o", 0, I(f"v_cvt_pk_bf16_f32 {v(r+2)}, {v(r+2)}, {v(r+3)}")),
                     ("o", 0, I(f"v_accvgpr_write_b32 {a(d)}, {v(r)}")),
                     ("o", 0, I(f"v_accvgpr_write_b32 {a(d+1)}, {v(r+2)}"))])
            for _, _, i_ in it: g0 = sch.put_va(g0, i_)
            groups.append((r, dt, qt, it))
    for k, m in enumerate(mf):
        q.e(m)
        for g, it in sch.gap(k): q.e(it)
    tl = Seq()
    intail = {id(x) for x in sch.tail}
    done = set()
    for x in sch.tail:
        if not any(x is i_ for _, _, _, it in groups for _, _, i_ in it): tl.e(x)
    for r, dt, qt, it in groups:
        for kind, e, i_ in it:
            if id(i_) not in intail or id(i_) in done: continue
            if kind in ("fma", "mul") and e % 2 == 0:
                mate = [z for kk, ee, z in it if kk == kind and ee == e + 1][0]
                if id(mate) in intail:
                    done.add(id(mate))
                    if kind == "fma":
                        tl.e(f"v_pk_fma_f32 {v(r+e,2)}, {v(STAT+2*qt,2)}, {v(CSV+4*dt+e,2)}, {v(r+e,2)} op_sel:[0,0,0] op_sel_hi:[0,1,1]")
                    else:
                        tl.e(f"v_pk_mul_f32 {v(r+e,2)}, {v(STAT+2*qt,2)}, {v(r+e,2)} op_sel:[1,0] op_sel_hi:[1,1]")
                    continue
            tl.e(i_)
    autonop(tl, q)
    qtail = len(tl)
    q.extend(tl)
    stamp(q, 2, 4, vt=244)
    qinfo = {k: round(np_blk(G, g), 1) for k, g in pos.items()}
    for k_, g_ in (("chk", gchk), ("ln", gln), ("zero", gz), ("gstat", gstat)): qinfo[k_] = round(np_blk(G, g_), 1)

    wstart = []; pos_ = 0; mkeys = []
    sumwin = {3: 0, 4: 1, 5: 2, 6: 3}
    for w in range(8):
        wstart.append(pos_)
        for qt in range(4):
            for t in range(4): mkeys.append(("qk", w, qt, (3 - t) if (qko == "snake" and qt & 1) else t, t == 0))
        for qt in range(4):
            for u in range(4): mkeys.append(("pv", w, qt, (3 - u) if (pvo == "snake" and not qt & 1) else u))
        pos_ += 32
        if w in sumwin:
            for u in range(nu): mkeys.append(("sum", sumwin[w], u))
            pos_ += nu
    PL = pos_
    wstart.append(PL)
    def GG(w, g): return wstart[w & 7] + (PL if w >= 8 else 0) + g
    ss = Sched(PL, modulo=True)
    place = {}
    for kb in range(8):
        for e in range(16):
            p = 8 + 2 * e
            g = GG(kb, p) if p < 32 else GG(kb + 1, p - 32)
            place[("exp", kb, e)] = ss.put_va(g, ("exp", kb, e), cost=2, exact=True)
    for w in range(8):
        for t in range(4):
            place[("kr", w + 1, t)] = ss.put_mem(GG(w, 17 + 2 * (t >> 1)), ("kr", w + 1, t))
        for u in range(4):
            for x in range(2):
                g = GG(w, 21 + 2 * u) if u < 2 else GG(w + 1, 2 * u - 3)
                place[("vr", w + 1, u, x)] = ss.put_mem(g, ("vr", w + 1, u, x))
    if dma_pos is None:
        dma_pos = [(w, g) for w in range(4) for g in (5, 9, 25, 29)]
    for j, (w, g) in enumerate(dma_pos):
        isk = j < 8
        if j % 4 == 0:
            ss.put_sc(GG(w, g - 1), ("m0", isk, (j >> 2) & 1), exact=True)
        ss.put_mem(GG(w, g), ("dma", isk, j & 7), cost=2)
        if j % 8 == 7:
            ss.put_sc(GG(w, g + 1), ("soff", isk, 0), exact=True)
            ss.put_sc(GG(w, g + 3), ("soff", isk, 1))
    for w in range(8):
        if w == 7:
            ss.put_sc(GG(w, 12), ("waitbar",), exact=True)
            ss.put_sc(GG(w, 14), ("bar",), exact=True)
        else:
            ss.put_sc(GG(w, 14), ("waitv", w), exact=True)
        ss.put_sc(GG(w, 30), ("waitk", w + 1), exact=True)
    ss.put_sc(GG(jw, 0) - 1, ("cnt", 0), exact=True)
    ss.put_sc(GG(jw, 0), ("cnt", 1), exact=True)
    ss.put_sc(GG(7, 2), ("cnt", 2), exact=True)
    fifo = []
    for kb in range(8):
        for e in range(16):
            ge = place[("exp", kb, e)]
            if kb >= 2 * nu: fifo.append((ge + 1, ("add", kb, e)))
            if e & 1: fifo.append((ge + 1, ("cvt", kb, e - 1)))
    fifo.sort(key=lambda z: z[0])
    rot = [f for f in fifo if f[1][1] >= 6] + [f for f in fifo if f[1][1] < 6]
    for ge, key in rot:
        place[key] = ss.put_va(ge, key)
    for key, g in place.items():
        if key[0] in ("add", "cvt", "exp"):
            kb, e = key[1], key[2]
            assert g < GG(kb + 2, 4 * (e >> 2)), (key, g)
        if key[0] == "cvt":
            kb, e = key[1], key[2]
            assert g < PL + mkeys.index(("pv", 0, e >> 2, kb >> 1)) - 1, (key, g)
    wrap = {k for k, g in place.items() if g >= PL}

    reads = {}
    def mk(key, par):
        kind = key[0]
        if kind == "qk": return qk_mfma(key[1], key[2], key[3], first=key[4])
        if kind == "pv": return pv_mfma(par, key[1], key[2], key[3])
        if kind == "sum": return sum_mfma(par, key[1], key[2])
        if kind == "exp": return exp_i(key[1], key[2])
        if kind == "cvt": return cvt_i(1 - par, key[1], key[2])
        if kind == "add": return add_i(key[1], key[2])
        if kind == "kr":
            kb = key[1]
            i = k_read((1 - par) if kb < 8 else par, kb & 7, key[2])
            reads.setdefault((par, "k", kb), []).append(i); return i
        if kind == "vr":
            db = key[1]
            i = v_read(par if db < 8 else 1 - par, db & 7, key[2], key[3])
            reads.setdefault((par, "v", db), []).append(i); return i
        if kind == "dma": return k_dma(key[2]) if key[1] else v_dma(key[2])
        if kind == "m0":
            slot = par if key[1] else 2 + (1 - par)
            return m0_set(slot * SLOT + key[2] * 4096)
        if kind == "soff":
            r = (S_K0 if key[1] else S_V0) + key[2]
            return I(f"s_add_u32 s{r}, s{r}, {SLOT}")
        if kind == "waitbar": return wait(vmn=0, lgn=0)
        if kind == "bar": return I("s_barrier")
        if kind == "waitv":
            w = key[1]
            return wait(lg=reads.setdefault((par, "v", w) if w else (1 - par, "v", 8), []))
        if kind == "waitk": return wait(lg=reads.setdefault((par, "k", key[1]), []))
        if kind == "cnt":
            if par == 0: return []
            if key[1] == 0: return I(f"s_add_u32 s{S_CNT}, s{S_CNT}, 1")
            if key[1] == 1: return [I(f"s_cmp_lt_u32 s{S_CNT}, 6"), I("s_cbranch_scc1 F_JOBS"), I("F_JRET:")]
            return I(f"s_cmp_eq_u32 s{S_CNT}, 7")
        raise KeyError(key)
    def body(par, drop=lambda key: False, extra=None):
        z = Seq()
        for k in range(PL):
            z.e(mk(mkeys[k], par))
            items = ss.gap(k)
            ex = (extra or {}).get(k, ([], [], []))
            nsc = len(ss.sc[k]); nmem = len(ss.mem[k])
            for n_, (g, key) in enumerate(items):
                if n_ == nsc: z.e(ex[0])
                if n_ == nsc + nmem: z.e(ex[1])
                if drop(key): continue
                z.e(mk(key, par if g < PL else 1 - par))
            if len(items) <= nsc: z.e(ex[0])
            if len(items) <= nsc + nmem and not (len(items) > nsc and False):
                if len(items) <= nsc + nmem: z.e(ex[1])
            z.e(ex[2])
        return z

    e0 = Seq()
    e0.e("F_QK0:")
    e0.e(f"s_mov_b32 s{S_CNT}, 0")
    e0.e("s_waitcnt lgkmcnt(0)")
    kr1 = [k_read(0, 1, t) for t in range(4)]
    init = ([f"v_mov_b32 v{LV+r}, 0" for r in range(8)] + [f"v_mov_b32 v{LM+r}, 0" for r in range(16)]
            + [f"v_xor_b32 v{VA+db}, {db << 5}, v{VA0}" for db in range(8)])
    n_ = 0
    for qt in range(4):
        for t in range(4):
            e0.e(qk_mfma(0, qt, t, czero=True))
            k = qt * 4 + t
            cnt = 2
            if k < 4: e0.e(kr1[k]); cnt = 1
            for _ in range(cnt):
                if n_ < len(init): e0.e(init[n_]); n_ += 1
    for x in init[n_:]: e0.e(x)
    e0.e(f"s_cmp_lg_u32 s{S_FB}, 0")
    e0.e("s_cbranch_scc1 F_HAVEM")
    mx = Seq()
    T = WF
    for qt in range(4):
        r = Sreg(0, qt)
        mx.e(f"v_max3_f32 v{T+qt}, v{r}, v{r+1}, v{r+2}")
        mx.e(f"v_max_f32 v{T+qt}, v{T+qt}, v{r+3}")
    for sw in ("v_permlane16_swap_b32", "v_permlane32_swap_b32"):
        for qt in range(4): mx.e(f"v_mov_b32 v{T+4+qt}, v{T+qt}")
        for qt in range(4): mx.e(f"{sw} v{T+qt}, v{T+4+qt}")
        for qt in range(4): mx.e(f"v_max_f32 v{T+qt}, v{T+qt}, v{T+4+qt}")
    for qt in range(4):
        for r in range(4): mx.e(f"v_sub_f32 v{NM+4*qt+r}, 0, v{T+qt}")
    autonop(mx, e0)
    e1 = Seq()
    e1.e("F_HAVEM:")
    for r in range(16): e1.e(f"v_add_f32 v{SR+r}, v{SR+r}, v{NM+r}")
    e1.e("s_waitcnt lgkmcnt(0)")
    mf = [qk_mfma(kb, qt, t) for kb in range(1, 8) for qt in range(4) for t in range(4)]
    n = len(mf)
    ps = Sched(n, cap=4)
    GP = lambda kb, g: (kb - 1) * 16 + g
    for kb in range(1, 7):
        rs = [k_read(0, kb + 1, t) for t in range(4)]
        for t in range(4): ps.put_mem(GP(kb, 1 + 2 * (t >> 1)), rs[t])
        if kb < 6: ps.put_sc(GP(kb, 14), wait(lg=rs), exact=True)
    kvrest = sum((grp[x][1] for x in ("K1a", "K1b", "V0a", "V0b")), [])
    wbar0 = wait(vm=kvrest, lgn=0)
    ps.put_sc(GP(6, 14), wbar0, exact=True)
    ps.put_sc(GP(6, 15), I("s_barrier"), exact=True)
    for t in range(4): ps.put_mem(GP(7, 1 + 2 * (t >> 1)), mk(("kr", 8, t), 1))
    for u in range(4):
        for x in range(2):
            if ("vr", 8, u, x) not in wrap: ps.put_mem(GP(7, 5 + 2 * u), mk(("vr", 8, u, x), 1))
    KV = 64
    ch = Chain(ps, 2)
    ch.put([I(f"s_lshl_b32 s42, s{S_W}, 2"), I(f"s_add_u32 s42, s42, {KEYX}"), I("s_lshl_b32 s43, s2, 3"),
            I(f"s_add_u32 s43, s43, {WS_KEY}")])
    ch.put(f"v_mov_b32 v{KV}, s{S_KEYW}")
    ch.put(f"v_mov_b32 v{KV+1}, s42")
    ch.put(f"v_mov_b32 v{KV+2}, {KEYX}")
    ch.put(f"v_mov_b32 v{KV+9}, s{S_EP}")
    ch.put(f"ds_write_b32 v{KV+1}, v{KV}")
    assert ch.g < GP(6, 0)
    ch.g = GP(7, 0)
    kx = ch.put(f"ds_read_b128 {v(KV+4,4)}, v{KV+2}")
    ch.put(wait(lg=[kx]), gap=9)
    ch.put(f"v_max3_u32 v{KV+8}, v{KV+4}, v{KV+5}, v{KV+6}")
    ch.put(f"v_max_u32 v{KV+8}, v{KV+8}, v{KV+7}")
    ch.put(masked(f"s[{M_W0L0}:{M_W0L0+1}]", I(f"buffer_store_dwordx2 {v(KV+8,2)}, off, {s(SRD_L,4)}, s43 sc1")))
    assert ch.g < n, (ch.g, n)
    pl2 = {}
    cur = 0
    for kb in range(8):
        for e in range(16):
            rdy = 0 if kb == 0 else GP(kb, 4 * (e >> 2) + 3 + 4)
            keys = [("exp", kb, e)] + ([("add", kb, e)] if kb >= 2 * nu else []) + ([("cvt", kb, e - 1)] if e & 1 else [])
            for key in keys:
                if key in wrap: continue
                if key[0] == "exp":
                    cur = ps.put_va(max(cur, rdy), mk(key, 1), cost=2); pl2[key] = cur
                else:
                    pl2[key] = ps.put_va(pl2[("exp", kb, e)] + 1, mk(key, 1))
    for key, g in pl2.items():
        kb, e = key[1], key[2]
        if kb + 2 < 8: assert g < GP(kb + 2, 4 * (e >> 2)), (key, g)
    for k, m in enumerate(mf):
        e1.e(m)
        for g, it in ps.gap(k): e1.e(it)
    e1.e("s_nop 4")
    tl = [i for i in ps.tail if i.kind == "trans"] + [I("s_nop 0")] + [i for i in ps.tail if i.kind != "trans"]
    for it in tl: e1.e(it)
    e1.e(mk(("waitk", 8), 1))
    stamp(e1, 2, 5, vt=244)

    b0 = Seq(); b0.e("F_LOOP:"); b0.extend(body(0))
    b1 = body(1)
    b1.e("s_cbranch_scc0 F_LOOP")
    kj = [k for k, i_ in enumerate(b1) if i_.text == "F_JRET:"][0]
    b1a, b1b = list(b1[:kj]), list(b1[kj:])

    jd = Seq()
    jd.e("F_JOBS:")
    for k in range(2, 6):
        jd.e(f"s_cmp_eq_u32 s{S_CNT}, {k}")
        jd.e(f"s_cbranch_scc1 F_J{k}")
    KY = 224
    keyl = [I(f"buffer_load_dwordx4 {v(KY+4*k,4)}, v{VL16}, {s(SRD_L,4)}, s42 offen offset:{k*1024} sc1") for k in range(2)]
    def ffn_srd(z, d, ptr, nbytes):
        z.e(f"s_mov_b32 s{d}, s{ptr}"); z.e(f"s_mov_b32 s{d+1}, s{ptr+1}")
        z.e(f"s_cmp_lt_u32 s{S_CH}, {NFF}"); z.e(f"s_cselect_b32 s{d+2}, {nbytes}, 0")
    def gu_dma(z, ptr, off, VG):
        z.e(f"v_lshrrev_b32 v{VG}, 4, v{VL16}")
        ffn_srd(z, SRD_W, ptr, 512 * 2752)
        z.e(f"v_mul_u32_u24 v{VG}, 2752, v{VG}")
        z.e(f"s_mul_i32 s42, s{S_W}, {128*2752}"); z.e(f"s_lshl_b32 s43, s{S_CH}, 4"); z.e("s_add_u32 s42, s42, s43")
        z.e(m0_set(LE + off))
        z.e(f"s_add_u32 s43, s42, {64*2752 - 1024}")
        z.e(f"buffer_load_dwordx4 v{VG}, {s(SRD_W,4)}, s42 offen lds")
        z.e(f"buffer_load_dwordx4 v{VG}, {s(SRD_W,4)}, s43 offen offset:1024 lds")
    ja = Seq()
    ja.e(f"s_mov_b32 s42, {WS_KEY}")
    ja.e(keyl)
    for t_ in od0_calc(240, 241, 242): ja.e(t_)
    ja.e(srd_off(SRD_X, A_WO, f"s{S_UOFF}", 31 * 1024 + 128))
    ja.e(m0_set(LE + UN_OFF))
    for k in range(4):
        ja.e(f"s_mov_b32 s{52+k}, {k*7168}")
    for k in range(4):
        ja.e(f"buffer_load_dwordx4 v240, {s(SRD_X,4)}, s{52+k} offen offset:{k*1024} lds")
    gu_dma(ja, A_WG, G_OFF, 243)
    autonop(ja)
    ja.e("s_branch F_JRET")
    jb = Seq()
    jb.e("F_J2:")
    UA, UF, BX = 236, 240, 239
    key_cmp = [f"v_cmp_eq_u32 {d}, s{S_EP}, v{KY+1+2*k}" for k, d in enumerate(("s[52:53]", "s[54:55]", "s[56:57]", "vcc"))]
    key_and = ["s_and_b64 s[52:53], s[52:53], s[54:55]", "s_and_b64 vcc, vcc, s[56:57]", "s_and_b64 vcc, vcc, s[52:53]"]
    for t_ in key_cmp: jb.e(t_)
    for t_ in wrd_calc(UA, UA + 1, UA + 2, VL16): jb.e(t_)
    jb.e(f"s_add_u32 s42, s{S_WB}, {LE + UN_OFF}")
    jb.e(f"v_add_u32 v{UA}, s42, v{UA}")
    for nt in range(1, 4): jb.e(f"v_xor_b32 v{UA+nt}, {nt << 5}, v{UA}")
    ur = [jb.e(f"ds_read_b64_tr_b16 {v(UF + 4*nt + 2*x, 2)}, v{UA+nt} offset:{x*2048}") for nt in range(4) for x in range(2)]
    jb.e(f"s_mov_b32 s42, {WS_KEY}")
    for t_ in key_and: jb.e(t_)
    jb.e("s_cmp_eq_u64 vcc, -1")
    jb.e("s_cbranch_scc0 F_SPIN2")
    jb.e("F_BACK2:")
    jb.e(f"v_max3_u32 v{KY}, v{KY}, v{KY+2}, v{KY+4}")
    jb.e(f"v_max_u32 v{KY}, v{KY}, v{KY+6}")
    fill = [f"v_lshrrev_b32 v{BX}, 8, v{VL16}", "s_lshl_b32 s43, s2, 14", f"v_lshlrev_b32 v{BX}, 4, v{BX}",
            f"s_add_u32 s43, s43, s{S_WB4}", f"s_add_u32 s43, s43, {WS_WOF}", f"s_lshl_b32 s58, s{S_W}, 8"]
    kz = Seq(); allreduce(kz, [KY], [KY + 1], op="v_max_u32")
    for i_ in kz:
        if i_.kind == "nop":
            if fill: jb.e(fill.pop(0))
            if fill and i_.nops > 1: jb.e(fill.pop(0))
        else: jb.e(i_)
    jb.e(fill)
    jb.e(f"v_readfirstlane_b32 s{S_KEY}, v{KY}")
    jb.e(wait(lg=ur))
    for nt in range(4):
        jb.e(f"buffer_store_dwordx4 {v(UF + 4*nt, 4)}, v{VL16}, {s(SRD_L,4)}, s43 offen offset:{nt*1024} sc1")
    jb.e([f"s_and_b32 s{S_IDXO}, s{S_KEY}, 0xffff", f"s_sub_u32 s{S_IDXO}, 0xffff, s{S_IDXO}",
          f"s_lshl_b32 s{S_IDXO}, s{S_IDXO}, 10", f"s_add_u32 s58, s58, s{S_IDXO}"])
    for ks in range(4):
        jb.e(f"buffer_load_dwordx4 {v(WF + 4*ks, 4)}, v{BX}, {s(SRD_L,4)}, s58 offen offset:{ks*64} sc1")
    gu_dma(jb, A_WU, U_OFF, 240)
    autonop(jb)
    jb.e("s_branch F_JRET")
    j1 = Seq()
    j1.e("F_J3:")
    FA, HD, AF = 252, 248, 240
    j1.e(f"v_lshrrev_b32 v{FA}, 8, v{VL16}")
    j1.e(f"v_bfe_u32 v{FA+1}, v{VL16}, 6, 2")
    j1.e(f"v_bfe_u32 v{FA+2}, v{VL16}, 4, 1")
    j1.e(f"v_bfe_u32 v{FA+3}, v{VL16}, 5, 1")
    j1.e(f"v_lshl_add_u32 v{FA+1}, v{FA}, 3, v{FA+1}")
    j1.e(f"s_add_u32 s42, s{S_WB}, {LE}")
    j1.e(f"v_lshlrev_b32 v{FA+1}, 4, v{FA+1}")
    j1.e(f"v_lshl_add_u32 v{FA+1}, v{FA+2}, 3, v{FA+1}")
    j1.e(f"v_lshl_add_u32 v{FA+1}, v{FA+3}, 11, v{FA+1}")
    j1.e(f"v_add_u32 v{FA+1}, s42, v{FA+1}")
    def frd(ks):
        return [j1.e(f"ds_read_b64_tr_b16 {v(AF + 4*(ks&1) + 2*x, 2)}, v{FA+1} offset:{ks*512 + 64*x}") for x in range(2)]
    fr_ = {0: frd(0), 1: frd(1)}
    j1.e(f"v_lshl_add_u32 v{FA}, v{FA}, 4, s42")
    j1.e("s_mov_b32 s54, 0x00010001")
    j1.e("s_mov_b32 s55, 0x00010001")
    for ks in range(4):
        j1.e(wait(lg=fr_[ks]))
        j1.e(f"{MF} {v(HD,4)}, {v(AF + 4*(ks&1),4)}, {v(WF + 4*ks,4)}, {v(HD,4) if ks else 0}")
        if ks < 2: fr_[ks + 2] = frd(ks + 2)
        if ks == 1:
            j1.e(f"v_lshrrev_b32 v{FA+2}, 8, v{VL16}")
            j1.e(f"v_and_b32 v{FA+3}, 0xf0, v{VL16}")
            ffn_srd(j1, SRD_W, A_WD, 1376 * 1024)
            j1.e(f"v_lshl_add_u32 v{FA+2}, v{FA+2}, 10, v{FA+3}")
            j1.e([f"s_lshl_b32 s56, s{S_W}, 8", f"s_lshl_b32 s57, s{S_CH}, 13", "s_add_u32 s56, s56, s57", m0_set(LE + D_OFF),
                  "s_add_u32 s57, s56, 3072"])
        if ks == 2: j1.e(f"buffer_load_dwordx4 v{FA+2}, {s(SRD_W,4)}, s56 offen lds")
        if ks == 3: j1.e(f"buffer_load_dwordx4 v{FA+2}, {s(SRD_W,4)}, s57 offen offset:1024 lds")
    j1.e(masked("s[54:55]", I(f"ds_write_b128 v{FA}, {v(HD,4)} offset:{H_OFF}")))
    autonop(j1)
    j1.e("s_branch F_JRET")
    j2 = Seq()
    j2.e("F_J4:")
    HP, DW, HU, HT, AD = 224, 240, 228, 232, 252
    j2.e(f"v_lshrrev_b32 v{AD}, 8, v{VL16}")
    j2.e(f"v_lshrrev_b32 v{AD+1}, 2, v{VL16}")
    j2.e(f"s_add_u32 s42, s{S_WB}, {LE + D_OFF}")
    j2.e(f"v_lshlrev_b32 v{AD}, 4, v{AD}")
    j2.e(f"v_add_u32 v{AD+1}, s42, v{AD+1}")
    j2.e(f"v_add_u32 v{AD}, {LE + H_OFF}, v{AD}")
    hr = [j2.e(f"ds_read_b128 {v(HP + 4*k, 4)}, v{AD} offset:{k*8192}") for k in range(4)]
    dwr = [j2.e(f"ds_read2st64_b32 {v(DW+j,2)}, v{AD+1} offset0:{j} offset1:{j+1}") for j in range(0, 8, 2)]
    j2.e(f"v_lshrrev_b32 v{AD}, 1, v{VL16}")
    j2.e("s_lshl_b32 s42, s2, 11")
    j2.e(f"s_lshl_b32 s43, s{S_W}, 9")
    j2.e("s_add_u32 s42, s42, s43")
    j2.e(f"s_add_u32 s42, s42, {WS_YP}")
    j2.e(wait(lg=hr))
    for e in range(4): j2.e(f"v_add_f32 v{HP+e}, v{HP+e}, v{HP+4+e}")
    for e in range(4): j2.e(f"v_add_f32 v{HP+8+e}, v{HP+8+e}, v{HP+12+e}")
    for e in range(4): j2.e(f"v_add_f32 v{HP+e}, v{HP+e}, v{HP+8+e}")
    j2.e(f"v_cvt_pk_bf16_f32 v{HT}, v{HP}, v{HP+1}")
    j2.e(f"v_cvt_pk_bf16_f32 v{HT+1}, v{HP+2}, v{HP+3}")
    j2.e(f"v_mov_b32 v{HT+2}, v{HT}")
    j2.e(f"v_mov_b32 v{HT+3}, v{HT+1}")
    j2.e(f"v_permlane32_swap_b32 v{HT}, v{HT+2}")
    j2.e(f"v_permlane32_swap_b32 v{HT+1}, v{HT+3}")
    unpack(j2, HP, HT, 2)
    unpack(j2, HU, HT + 2, 2)
    j2.extend(silu_list(HP, HP, HT, 4))
    for e in range(4): j2.e(f"v_mul_f32 v{HP+e}, v{HP+e}, v{HU+e}")
    j2.e(f"v_cvt_pk_bf16_f32 v{HT}, v{HP}, v{HP+1}")
    j2.e(f"v_cvt_pk_bf16_f32 v{HT+1}, v{HP+2}, v{HP+3}")
    unpack(j2, HP, HT, 2)
    for j in range(8): j2.e(f"v_readlane_b32 s{52+j}, v{HP+(j&3)}, {16*(j>>2)}")
    j2.e(wait(lg=dwr))
    YA = 248
    for j in range(8): j2.e(f"v_lshlrev_b32 v{HP+j}, 16, v{DW+j}")
    for j in range(8): j2.e(f"v_and_b32 v{DW+j}, 0xffff0000, v{DW+j}")
    for j in range(8):
        for e, src in enumerate((HP + j, DW + j)):
            if j == 0: j2.e(f"v_mul_f32 v{YA+e}, s52, v{src}")
            else: j2.e(f"v_fmac_f32 v{YA+e}, s{52+j}, v{src}")
    j2.e(f"buffer_store_dwordx2 {v(YA,2)}, v{AD}, {s(SRD_L,4)}, s42 offen sc1")
    autonop(j2)
    j2.e("s_branch F_JRET")
    j3_ = Seq()
    j3_.e("F_J5:")
    VSJ = 224
    j3_.e(f"v_mov_b32 v{VSJ+2}, s{S_EP}")
    j3_.e(f"v_mov_b32 v{VSJ+3}, s{S_EP2}")
    j3_.e(f"s_mov_b32 s42, {WS_EP}")
    j3_.e("s_cmp_eq_u32 s2, 0")
    j3_.e(f"s_cselect_b64 s[52:53], s[{M_W0L0}:{M_W0L0+1}], 0")
    j3_.e(f"s_mov_b64 exec, s[{M_W0L0}:{M_W0L0+1}]")
    j3_.e(f"buffer_store_dwordx2 {v(VSJ+2,2)}, off, {s(SRD_L,4)}, s{S_SJ} sc1")
    j3_.e("s_mov_b64 exec, s[52:53]")
    j3_.e(f"buffer_store_dword v{VSJ+2}, off, {s(SRD_L,4)}, s42 sc1")
    j3_.e("s_mov_b64 exec, -1")
    if pf & 2:
        j3_.e(f"v_lshl_add_u32 v{VSJ+8}, v{VL16}, 3, s{S_WB}")
        j3_.e(f"v_min_u32 v{VSJ+8}, F_FB-F_LAST-4, v{VSJ+8}")
        j3_.e(f"global_load_dword v{VSJ+9}, v{VSJ+8}, s[100:101]")
    j3_.e(f"v_lshrrev_b32 v{VSJ}, 4, v{VL16}")
    j3_.e(f"s_mul_i32 s42, s{S_W}, 48")
    j3_.e(f"s_lshl_b32 s43, s{S_QBLK}, 2")
    j3_.e(f"s_add_u32 s43, s43, s{S_W}")
    j3_.e("s_lshl_b32 s43, s43, 3")
    j3_.e(f"v_cmp_gt_u32 vcc, 48, v{VSJ}")
    j3_.e(f"v_and_b32 v{VSJ+1}, 7, v{VSJ}")
    j3_.e(f"v_add_u32 v{VSJ}, s42, v{VSJ}")
    j3_.e(f"v_add_u32 v{VSJ+1}, s43, v{VSJ+1}")
    j3_.e(f"v_cndmask_b32 v{VSJ}, v{VSJ+1}, v{VSJ}, vcc")
    j3_.e(f"v_lshlrev_b32 v{VSJ}, 7, v{VSJ}")
    for t_ in od0_calc(VSJ + 4, VSJ + 5, VSJ + 6): j3_.e(t_)
    j3_.e(srd_off(SRD_W, A_WO, f"s{S_WOOFF}", 0)[:2])
    j3_.e(f"s_sub_u32 s{SRD_W+2}, {4*MB}, s{S_WOOFF}")
    j3_.e(f"s_lshl_b32 s42, s{S_QBLK}, 19")
    j3_.e(f"s_lshl_b32 s43, s{S_W}, 17")
    j3_.e("s_add_u32 s42, s42, s43")
    j3_.e(f"s_add_u32 s42, s42, {WS_WOF}")
    j3_.e(srd_off(SRD_J, 4, "s42", 131072))
    autonop(j3_)
    j3_.e("s_branch F_JRET")

    LOC = {2: LA, 3: LA + 4096, 4: LB, 5: LB + 4096, 6: LC, 7: LC + 4096, 8: LD, 9: LD + 4096, 10: LE, 11: LE + 4096}
    def woreg(kap):
        if kap < 2: return ("v", WF + 16 * kap)
        if kap < 14: return ("a", 192 + 16 * (kap - 12))
        if kap < 18: return ("a", 128 + 16 * (kap - 14))
        if kap < 26: return ("a", 16 * (kap - 18))
        if kap < 28: return ("a", 224 + 16 * (kap - 26))
        return woreg(kap - 16)
    wod = {}
    def wo_grp(kap, vl=VL16):
        if kap in LOC:
            r = ([I(f"s_mov_b32 s{S_RO}, {kap * 32768}"), m0_set(LOC[kap])],
                 [I(f"buffer_load_dwordx4 v{OD+k}, {s(SRD_W,4)}, s{S_RO} offen offset:{k*1024} lds") for k in range(4)])
        else:
            p, b = woreg(kap)
            r = ([I(f"s_mov_b32 s{S_JO}, {kap * 4096}")],
                 [I(f"buffer_load_dwordx4 {rng(p, b + 4*k, 4)}, v{vl}, {s(SRD_J,4)}, s{S_JO} offen offset:{k*1024} sc1") for k in range(4)])
        wod[kap] = r[1]
        return r

    ex = {}
    def exput(k, cls, ins): ex.setdefault(k, ([], [], []))[cls].append(ins)
    vl_ = [v_dma(j) for j in range(8)]
    slots = [(w, g) for w in range(8) for g in (5, 9, 25, 29)]
    for j in range(8):
        w, g = slots[j]
        if j % 4 == 0: exput(GG(w, g - 1), 0, m0_set(3 * SLOT + (j >> 2) * 4096))
        exput(GG(w, g), 1, vl_[j])
    sjp = I(f"buffer_load_dwordx2 {v(VSJ+2,2)}, v{VSJ}, {s(SRD_L,4)}, s42 offen sc1")
    tag_cmp = lambda r: [f"v_cmp_eq_u32 vcc, s{S_EP}, v{r}", f"v_cmp_eq_u32 s[42:43], s{S_EP2}, v{r+1}"]
    tag_cmp52 = lambda r: [f"v_cmp_eq_u32 vcc, s{S_EP}, v{r}", f"v_cmp_eq_u32 s[52:53], s{S_EP2}, v{r+1}"]
    exput(GG(0, 10), 0, I(f"s_mov_b32 s42, {WS_SJ}"))
    exput(GG(0, 13), 1, sjp)
    for k in range(4):
        exput(GG(1, 11 + 2 * k), 2, I(f"v_add_u32 v{OD+k}, {k*7168}, v{VSJ+4}"))
    for n_, kap in enumerate((2, 3, 10, 11, 0, 1)):
        sc_, dm = wo_grp(kap)
        for k in range(4):
            w, g = slots[8 + 4 * n_ + k]
            if k == 0:
                for m_, i_ in enumerate(sc_): exput(GG(w, g - 2 * len(sc_) + 2 * m_ + 1), 0, i_)
            exput(GG(w, g), 1, dm[k])
    exput(GG(5, 6), 0, wait(vm=[sjp]))
    exput(GG(5, 6), 2, I(tag_cmp52(VSJ + 2)[0]))
    exput(GG(5, 7), 2, I(tag_cmp52(VSJ + 2)[1]))
    exput(GG(5, 12), 0, [I("s_and_b64 vcc, vcc, s[52:53]"), I("s_cmp_eq_u64 vcc, -1"), I("s_cbranch_scc0 F_SPIN3"), I("F_BACK3:")])
    exput(GG(7, 12), 0, wait(vm=vl_, lgn=0))
    bl = Seq(); bl.e("F_LAST:")
    bl.extend(body(0, drop=lambda key: key[0] in ("dma", "m0", "soff", "waitbar") or key[:2] in (("kr", 8), ("waitk", 8)),
                   extra=ex))

    ep = Seq()
    mf = [sum_mfma(1, qt, u) for qt in range(4) for u in range(nu)]
    ns = len(mf)
    mf += [pv_mfma(1, db, qt, u) for db in range(8) for qt in range(4) for u in range(4)]
    es = Sched(len(mf), cap=ecap)
    GE = lambda db, g: ns + 16 * db + g
    pre = Seq()
    wl = sorted(wrap, key=lambda k: place[k])
    for kind in ("vr", "exp", "cvt", "add"):
        for key in wl:
            if key[0] == kind: pre.e(mk(key, 0))
        if kind == "exp":
            pre.e("s_mov_b32 s42, 0x4e800000")
            for qt in range(4): pre.e(f"s_mov_b32 s{S_Q+qt}, {qt*131072}")
    pre.e("s_waitcnt lgkmcnt(0)")
    for db in range(7):
        rs = []
        for u in range(4):
            for x in range(2):
                i = v_read(1, db + 1, u, x); rs.append(i)
                es.put_mem(GE(db, 1 + 2 * u), i)
        es.put_sc(GE(db, 14), wait(lg=rs), exact=True)
    queue = [4, 5, 6, 12, 13, 7, 8, 9] + list(range(14, 28))
    nepi = 5
    tg = 1.0; cur = 0; cnt = 0
    for kap in queue[:nepi]:
        sc_, dm = wo_grp(kap)
        for i_ in sc_: cur = es.put_sc(cur, i_) + 1
        for i_ in dm:
            cur = es.put_mem(max(cur, int(tg)), i_, cost=2, exact=False) + 1
            cnt += 1; tg = max(tg + (epi_pa if cnt < epi_a else epi_pb), cur + 1)
    RL = SR + 8; TT = SR + 12; FL = SR + 16
    g = 0
    def fin(text, gap=0):
        nonlocal g
        g = es.put_va(g + gap, I(text), cost=2 if "rcp" in text else 1)
    for qt in range(4): fin(f"v_add_f32 v{RL+qt}, v{LV+2*qt}, v{LV+2*qt+1}")
    for sw in ("v_permlane16_swap_b32", "v_permlane32_swap_b32"):
        for qt in range(4): fin(f"v_mov_b32 v{TT+qt}, v{RL+qt}")
        for qt in range(4): fin(f"{sw} v{RL+qt}, v{TT+qt}", gap=1 if qt == 0 else 0)
        for qt in range(4): fin(f"v_add_f32 v{RL+qt}, v{RL+qt}, v{TT+qt}")
    g = max(g, ns + 4)
    if nu:
        for qt in range(4): fin(f"v_add_f32 v{RL+qt}, v{RL+qt}, v{LM+4*qt}")
    for qt in range(4): fin(f"v_cmp_nle_f32 s[{52+2*qt}:{53+2*qt}], v{RL+qt}, s42")
    for qt in range(4): fin(f"v_rcp_f32 v{RL+qt}, v{RL+qt}")
    g2 = g + 2
    g2 = es.put_sc(g2, I("s_or_b64 s[52:53], s[52:53], s[54:55]")) + 1
    g2 = es.put_sc(g2, I("s_or_b64 s[56:57], s[56:57], s[58:59]")) + 1
    g2 = es.put_sc(g2, I("s_or_b64 s[52:53], s[52:53], s[56:57]")) + 1
    g2 = es.put_sc(g2, I("s_or_b32 s52, s52, s53")) + 1
    g2 = es.put_sc(g2, I(f"s_add_u32 s53, s{S_WB}, {FLG}")) + 1
    g2 = es.put_va(g2, I(f"v_mov_b32 v{TT}, s52"))
    g2 = es.put_va(g2, I(f"v_mov_b32 v{TT+1}, s53"))
    g2 = es.put_va(g2, I(f"v_mov_b32 v{TT+2}, {FLG}")) + 1
    fw = I(f"ds_write_b32 v{TT+1}, v{TT}")
    g2 = es.put_mem(g2, fw, exact=False) + 4
    g2 = es.put_sc(g2, wait(lg=[fw])) + 1
    g2 = es.put_sc(g2, I("s_barrier")) + 1
    for k in range(4):
        g2 = es.put_mem(g2, I(f"ds_read_b32 v{FL+k}, v{TT+2} offset:{k*8192}"), exact=False)
    gn = g + 2
    grp_ = 0
    ost = []
    pairs = []
    for s_ in range(4):
        for qt in range(4):
            st_ = (grp_ % 5) * 12; grp_ += 1
            rdy = GE(2 * s_ + 1, 4 * qt + 3 + 5)
            gn = max(gn, rdy)
            for x in range(2):
                for r in range(4):
                    gn = es.put_va(gn, I(f"v_accvgpr_read_b32 v{st_+4+4*x+r}, {a(Oreg(2*s_+x, qt)+r)}"))
            ml = [I(f"v_mul_f32 v{st_+4+k}, v{st_+4+k}, v{RL+qt}") for k in range(8)]
            for k in range(8): gn = es.put_va(gn, ml[k])
            for k in range(0, 8, 2):
                sel = "op_sel:[0,0] op_sel_hi:[1,0]" if qt % 2 == 0 else "op_sel:[0,1] op_sel_hi:[1,1]"
                pairs.append((ml[k], ml[k + 1], f"v_pk_mul_f32 {v(st_+4+k,2)}, {v(st_+4+k,2)}, {v(RL+(qt&2),2)} {sel}"))
            for k in range(4):
                gn = es.put_va(gn, I(f"v_cvt_pk_bf16_f32 v{st_+k}, v{st_+4+2*k}, v{st_+5+2*k}"))
            stn = I(f"buffer_store_dwordx4 {v(st_,4)}, v{VL16}, {s(SRD_O,4)}, s{S_Q+qt} offen offset:{s_*1024} sc1")
            ost.append(stn)
            es.put_mem(gn + 1, stn, cost=2, exact=False)
    stamp(ep, 2, 6, vt=60)
    ep.extend(pre)
    for k, m in enumerate(mf):
        ep.e(m)
        for g_, it in es.gap(k): ep.e(it)
    tl = Seq()
    intail = {id(x) for x in es.tail}
    rep = {}
    for m0_, m1_, tx in pairs:
        if id(m0_) in intail and id(m1_) in intail: rep[id(m0_)] = tx; rep[id(m1_)] = None
    for it in es.tail:
        if id(it) in rep:
            if rep[id(it)]: tl.e(rep[id(it)])
        else: tl.e(it)
    autonop(tl, ep)
    etail = len(tl)
    ep.extend(tl)
    stamp(ep, 2, 7, vt=60)
    ck = Seq()
    ck.e(wait(vm=wod[1], lgn=0))
    ck.e(f"v_or3_b32 v{FL}, v{FL}, v{FL+1}, v{FL+2}")
    ck.e(f"v_or_b32 v{FL}, v{FL}, v{FL+3}")
    ck.e("s_barrier")
    ck.e(f"v_readfirstlane_b32 s52, v{FL}")
    ck.e(f"s_andn2_b32 s52, s52, s{S_FB}")
    ck.e("s_cmp_lg_u32 s52, 0")
    ck.e("s_cbranch_scc1 F_FB")
    autonop(ck, ep)
    ep.extend(ck)

    VL = 195; EA = 193; VY = 194; RS = 196; WOA = 200; VP2 = 204; VTG = 206
    XP, XNP = 208, 216
    S_XOFF, S_ATT = S_XO0, S_XO1
    setup = Seq()
    setup.e(f"v_mov_b32 v{VL}, v{VL16}")
    for t_ in wrd_calc(WOA, 60, 61, VL16): setup.e(t_)
    setup.e(f"v_add_u32 v{WOA}, s{S_WB}, v{WOA}")
    setup.e(f"v_and_b32 v61, 0xf0, v{VL16}")
    setup.e(f"v_lshrrev_b32 v62, 8, v{VL16}")
    for nt in range(1, 4): setup.e(f"v_xor_b32 v{WOA+nt}, {nt << 5}, v{WOA}")
    setup.e("v_lshlrev_b32 v61, 6, v61")
    setup.e(f"v_lshl_add_u32 v{EA}, v62, 5, v61")
    setup.e(f"v_and_b32 v{VY}, 0x70, v{VL16}")
    setup.e(f"v_mov_b32 v{VTG}, s{S_EP}")
    setup.e(f"v_mov_b32 v{VTG+1}, s{S_EP2}")
    setup.e(f"v_lshlrev_b32 v{VY}, 3, v{VY}")
    setup.e([I(f"s_lshl_b32 s54, s{S_QB}, 2"), I(f"s_add_u32 s54, s54, s{S_W}"), I("s_lshl_b32 s54, s54, 14"),
             I(f"s_lshl_b32 s55, s{S_QBLK}, 7"), I(f"s_add_u32 s{S_XOFF}, s54, s55")])
    setup.e(srd_grp(52, A_X, 2 * MB))
    setup.e([I(f"s_lshl_b32 s{S_ATT}, s{S_QB}, 12"), I(f"s_lshl_b32 s42, s{S_W}, 10"), I(f"s_add_u32 s{S_ATT}, s{S_ATT}, s42"),
             I(f"s_add_u32 s{S_ATT}, s{S_ATT}, {WS_ATT}")])
    setup.e([I(f"s_lshl_b32 s42, s{S_QB}, 19"), I(f"s_lshl_b32 s43, s{S_W}, 15"), I("s_add_u32 s42, s42, s43"),
             I(f"s_add_u32 s42, s42, {WS_OF}")])
    su2 = [srd_off(SRD_F, 4, "s42", 3 * 131072 + 32768), srd_grp(56, A_OUT, 2 * MB), [I(f"s_mov_b64 s[{M_LEFT}:{M_LEFT+1}], -1")]]
    lx = [I(f"buffer_load_dwordx4 {v(XP,4)}, v{EA}, s[52:55], s{S_XOFF} offen"),
          I(f"buffer_load_dwordx4 {v(XP+4,4)}, v{EA}, s[52:55], s{S_XOFF} offen offset:16"),
          I(f"buffer_load_dwordx4 {v(XNP,4)}, v{EA}, {s(SRD_L,4)}, s{S_XOFF} offen sc1"),
          I(f"buffer_load_dwordx4 {v(XNP+4,4)}, v{EA}, {s(SRD_L,4)}, s{S_XOFF} offen offset:16 sc1")]
    su3 = [srd_off(52, 4, WS_YP, 0), [I(f"s_lshr_b32 s42, s{S_IDXO}, 16"), I(f"s_cmp_eq_u32 s42, s{S_QB}"),
                                      I(f"s_cselect_b32 s54, {NYP * 2048}, 0")]]
    seamq = queue[nepi:len(queue) - nleft]
    left = queue[len(queue) - nleft:]
    items = []
    for kap in seamq:
        sc_, dm = wo_grp(kap, VL16 if kap in LOC else VL)
        for k, i_ in enumerate(dm): items.append((sc_ if k == 0 else [], i_))
        if kap == 9: items += [([], i_) for i_ in lx]
    fillers = [[i_] for i_ in setup] + su2
    poll2 = I(f"buffer_load_dwordx2 {v(VP2,2)}, v{VY}, {s(SRD_L,4)}, s{S_ATT} offen sc1")
    sm = Seq()
    for n_, (sc_, i_) in enumerate(items):
        if n_ == n1:
            sm.e(wait(vm=ost))
            sm.e(masked("1", I(f"buffer_store_dwordx2 {v(VTG,2)}, off, {s(SRD_L,4)}, s{S_ATTP} sc1")))
            stamp(sm, 2, 8, vt=40)
        if n_ == n2:
            sm.e(poll2)
            stamp(sm, 2, 9, vt=40)
        sm.e(sc_)
        k = 0
        while fillers and (k < 4 or (n_ == 11)):
            sm.e(fillers.pop(0)); k += 1
        if n_ == 16:
            for z in su3: sm.e(z)
        sm.e(i_)
    assert not fillers and n2 < len(items) and n1 >= 12
    sm.e(wait(vm=[poll2]))
    sm.e(tag_cmp(VP2))
    sm.e("s_nop 3")
    sm.e("s_and_b64 vcc, vcc, s[42:43]")
    sm.e("s_cmp_eq_u64 vcc, -1")
    sm.e("s_cbranch_scc0 F_SPIN4")
    sm.e("F_BACK4:")
    stamp(sm, 2, 10, vt=40)
    autonop(sm, ep)
    leftpre = []
    for kap in left:
        sc_, dm = wo_grp(kap, VL)
        leftpre += sc_ + dm
    leftpre.append(I(f"s_mov_b64 s[{M_LEFT}:{M_LEFT+1}], 0"))

    ACC, RING = 0, 64
    gm = Seq()
    def of_load(i, qt):
        return I(f"buffer_load_dwordx4 {v(RING + 16*(i % depth) + 4*qt, 4)}, v{VL}, {s(SRD_F,4)}, s{S_Q+qt} offen offset:{(i&3)*1024} sc1")
    def of_soff(i, qt): return I(f"s_mov_b32 s{S_Q+qt}, {qt*131072 + (i >> 2)*4096}")
    ofl = {}
    for i in range(depth):
        for qt in range(4):
            if i and i % 4 == 0: gm.e(of_soff(i, qt))
            ofl[(i, qt)] = gm.e(of_load(i, qt))
    mf = []
    for i in range(32):
        for qt in range(4):
            for nt_ in range(4):
                nt = nt_ if qt % 2 == 0 else 3 - nt_
                p, b = ("v", WF + 16 * (i & 1)) if i < 12 else woreg(i)
                ac = v(ACC + 16 * qt + 4 * nt, 4)
                mf.append(I(f"{MF} {ac}, {rng(p, b + 4*nt, 4)}, {v(RING + 16*(i % depth) + 4*qt, 4)}, {ac if i else 0}"))
    gs = Sched(512)
    for i in range(32 - depth):
        for qt in range(4): ofl[(i + depth, qt)] = of_load(i + depth, qt)
    late = {}
    for kap in left + [28, 29, 30, 31]: late[kap] = wo_grp(kap, VL)
    for i in range(32):
        for qt in range(4):
            gq = 16 * i + 4 * qt
            if gq: gs.put_sc(gq - 1, wait(vm=[ofl[(i, qt)]] + (wod[i] if (qt == 0 and i >= 12) else [])), exact=True)
            if i + depth < 32:
                if (i + depth) % 4 == 0: gs.put_sc(gq + 1, of_soff(i + depth, qt), exact=True)
                gs.put_mem(gq + 3, ofl[(i + depth, qt)], cost=2)
    base = 0
    for i in range(1, 11):
        kap = i + 1
        nb_ = LOC[kap] & ~0xffff
        if nb_ != base:
            for nt in range(4): gs.put_va(16 * (i - 1) + 10, I(f"v_add_u32 v{WOA+nt}, {nb_ - base}, v{WOA+nt}"))
            base = nb_
        gs.put_sc(16 * i, wait(vm=wod[kap]), exact=True)
        rd = [I(f"ds_read_b64_tr_b16 {v(WF + 16*(kap & 1) + 4*nt + 2*x, 2)}, v{WOA+nt} offset:{LOC[kap] - base + x*2048}")
              for nt in range(4) for x in range(2)]
        for k, i_ in enumerate(rd): gs.put_mem(16 * i + (2, 4, 6, 8)[k >> 1], i_)
        gs.put_sc(16 * i + 14, wait(lg=rd), exact=True)
    ch = Chain(gs, 1)
    for kap in left:
        sc_, dm = late[kap]
        ch.put(sc_)
        for i_ in dm: ch.put(masked(f"s[{M_LEFT}:{M_LEFT+1}]", i_), gap=3)
    gleft = ch.g
    for kap in range(28, 32):
        ch.g = max(ch.g, 16 * (kap - 28 + 13) + 2)
        sc_, dm = late[kap]
        ch.put(sc_)
        for i_ in dm: ch.put(i_, gap=3)
    gstream = ch.g
    ch = Chain(gs, 16 * 2)
    ch.put([I(f"s_and_b32 s42, s{S_KEY}, 0xffff0000"), I("s_xor_b32 s43, s42, 0x80000000"),
            I(f"s_xor_b32 s{S_T}, s42, 0xffff0000"), I("s_bitcmp1_b32 s42, 31"), I(f"s_cselect_b32 s42, s43, s{S_T}")])
    ch.put(f"v_mov_b32 v{RS}, s42")
    ch.put(f"v_mul_f32 v{RS}, s{S_NL2E}, v{RS}")
    ch.put(f"v_exp_f32 v{RS}, v{RS}")
    ch.put(f"v_add_f32 v{RS}, 1.0, v{RS}")
    ch.put(f"v_rcp_f32 v{RS}, v{RS}")
    ch.put(f"v_cvt_pk_bf16_f32 v{RS}, v{RS}, v{RS}")
    ch.put(f"v_lshlrev_b32 v{RS}, 16, v{RS}")
    ch.put(f"s_add_u32 s42, s{S_WB}, {LE}")
    ch.put(f"v_add_u32 v{RS+2}, s42, v{VL}")
    ch.put(f"v_lshrrev_b32 v{RS+3}, 2, v{VL}")
    ch.put(f"v_add_u32 v{RS+3}, {LE}, v{RS+3}")
    ch.put(f"v_and_b32 v{VY}, 0xf0, v{VL}")
    ch.put(f"v_lshrrev_b32 v{RS+1}, 8, v{VL}")
    ch.put(f"v_lshl_add_u32 v{VY}, v{RS+1}, 11, v{VY}")
    ch.put([I(f"s_bfe_u32 s42, s{S_IDXO}, 0x6000a"), I(f"s_lshl_b32 s43, s{S_W}, 4"), I("s_sub_u32 s42, s42, s43"),
            I(f"s_add_u32 s43, s{S_WB}, {LE + 1024}")])
    ch.put(f"v_bfe_u32 v{VP2}, v{VL}, 4, 4")
    ch.put(f"v_cmp_eq_u32 vcc, s42, v{VP2}")
    ch.put(f"v_lshlrev_b32 v{RS+1}, 6, v{RS+1}")
    ch.put(f"v_mov_b32 v{VP2}, 0x100")
    ch.put(f"v_cndmask_b32 v{RS+1}, v{VP2}, v{RS+1}, vcc")
    ch.put(f"v_add_u32 v{RS+1}, s43, v{RS+1}")
    ch.put(f"v_mov_b32 v{VP2}, 0")
    ch.put([I(f"s_mul_i32 s42, s{S_W}, {48*2048}"), I(f"s_lshl_b32 s{S_T}, s{S_QBLK}, 8"), I(f"s_add_u32 s42, s42, s{S_T}")])
    ch.g = max(ch.g, 16 * 11 + 1)
    YX = WOA
    yl = []
    for k in range(12):
        if k == 4: ch.g = max(ch.g, 16 * 12 + 1)
        if k == 8:
            ch.g = max(ch.g, ch.g + 24)
            ch.put(wait(vm=yl))
            for kk in range(1, 8):
                for e in range(4): ch.put(f"v_add_f32 v{WF+e}, v{WF+e}, v{WF+4*kk+e}")
        dst = v(WF + 4 * k, 4) if k < 8 else v(WF + 4 * (k - 7), 4) if k < 11 else v(YX, 4)
        yl.append(ch.put(f"buffer_load_dwordx4 {dst}, v{VY}, s[52:55], s42 offen sc1", gap=1))
        if k < 11: ch.put("s_add_u32 s42, s42, 8192")
    Z, TZ = WF, WF + 16
    ch.put(wait(vm=lx))
    zz = Seq(); unpack(zz, TZ, XNP, 8)
    for i_ in zz: ch.put(i_)
    ch.g += 12
    ch.put(wait(vm=yl))
    for k in range(1, 5):
        for e in range(4): ch.put(f"v_add_f32 v{WF+e}, v{WF+e}, v{(WF+4*k if k < 4 else YX)+e}")
    for sw in ("v_permlane16_swap_b32", "v_permlane32_swap_b32"):
        for e in range(4): ch.put(f"v_mov_b32 v{WF+4+e}, v{WF+e}")
        for e in range(4): ch.put(f"{sw} v{WF+e}, v{WF+4+e}")
        for e in range(4): ch.put(f"v_add_f32 v{WF+e}, v{WF+e}, v{WF+4+e}")
    ch.put(f"ds_write_b128 v{RS+2}, {v(WF,4)}")
    ch.put(wait(lgn=0), gap=3)
    ch.put("s_barrier", gap=1)
    gbar = ch.g
    yr = [ch.put(f"ds_read_b32 v{WF+k}, v{RS+3} offset:{k*8192}") for k in range(4)]
    ch.put(f"v_add_u32 v{RS+3}, s{S_WB}, v{RS+3}")
    ch.put(wait(lg=yr), gap=3)
    ch.put(f"v_add_f32 v{WF}, v{WF}, v{WF+1}")
    ch.put(f"v_add_f32 v{WF+2}, v{WF+2}, v{WF+3}")
    ch.put(f"v_add_f32 v{WF}, v{WF}, v{WF+2}")
    ch.put(f"v_cvt_pk_bf16_f32 v{WF}, v{WF}, v{WF}")
    ch.put(f"v_lshlrev_b32 v{WF}, 16, v{WF}")
    ch.put(f"v_mul_f32 v{WF}, v{WF}, v{RS}")
    ch.put(f"v_cvt_pk_bf16_f32 v{WF}, v{WF}, v{WF}")
    ch.put(f"v_lshlrev_b32 v{WF}, 16, v{WF}")
    y1 = ch.put(f"ds_write_b32 v{RS+3}, v{WF} offset:1024")
    y2 = ch.put(f"ds_write_b32 v{RS+3}, v{VP2} offset:1280")
    ch.put(wait(lg=[y1, y2]), gap=2)
    zr = [ch.put(f"ds_read_b128 {v(Z+4*k,4)}, v{RS+1} offset:{16*k}") for k in range(4)]
    ch.put(wait(lg=zr), gap=3)
    for e in range(16): ch.put(f"v_add_f32 v{Z+e}, v{Z+e}, v{TZ+e}")
    for e in range(8): ch.put(f"v_cvt_pk_bf16_f32 v{TZ+e}, v{Z+2*e}, v{Z+2*e+1}")
    zz = Seq(); unpack(zz, Z, TZ, 8)
    for i_ in zz: ch.put(i_)
    for i_ in silu_list(Z, Z, TZ, 16): ch.put(i_)
    zz = Seq(); unpack(zz, TZ, XP, 8)
    for i_ in zz: ch.put(i_)
    ch.put(f"v_add_u32 v{RS}, s{S_WB4}, v{VL}")
    ch.put(f"s_lshl_b32 s42, s{S_W}, 14")
    ch.put(f"v_and_b32 v{RS+1}, 0xf0, v{VL}")
    ch.put(f"v_lshrrev_b32 v{RS+2}, 8, v{VL}")
    ch.put(f"v_lshl_add_u32 v{RS+1}, v{RS+2}, 10, v{RS+1}")
    ch.put(f"v_add_u32 v{RS+1}, s42, v{RS+1}")
    gend = ch.g
    gm.e(wait(vm=[ofl[(0, 0)]] + wod[0] + wod[1]))
    stamp(gm, 2, 11, vt=40)
    for k, m in enumerate(mf):
        gm.e(m)
        for g_, it in gs.gap(k): gm.e(it)
    tl = Seq()
    for it in gs.tail: tl.e(it)
    gtail = len(tl)
    stamp(tl, 2, 12, vt=RING)
    for qt in range(4):
        for nt in range(4):
            tl.e(f"ds_write_b128 v{RS}, {v(ACC+16*qt+4*nt,4)} offset:{qt*16384+nt*1024}")
        if qt == 2: tl.e("s_waitcnt lgkmcnt(4)")
    tl.e("s_waitcnt lgkmcnt(0)")
    tl.e("s_barrier")
    rr = {}
    for sw in range(4):
        rr[sw] = [tl.e(f"ds_read_b128 {v(RING+16*sw+4*k,4)}, v{RS+1} offset:{sw*4096+k*256}") for k in range(4)]
        if sw == 2: tl.e(wait(lg=rr[0]))
    tl.e(wait(lg=rr[1]))
    for e in range(0, 16, 2): tl.e(f"v_pk_add_f32 {v(RING+e,2)}, {v(RING+e,2)}, {v(RING+16+e,2)}")
    tl.e(wait(lg=rr[3]))
    for e in range(0, 16, 2): tl.e(f"v_pk_add_f32 {v(RING+32+e,2)}, {v(RING+32+e,2)}, {v(RING+48+e,2)}")
    for e in range(0, 16, 2): tl.e(f"v_pk_add_f32 {v(RING+e,2)}, {v(RING+e,2)}, {v(RING+32+e,2)}")
    for e in range(8): tl.e(f"v_cvt_pk_bf16_f32 v{RING+16+e}, v{RING+2*e}, v{RING+2*e+1}")
    unpack(tl, RING, RING + 16, 8)
    for e in range(0, 16, 2): tl.e(f"v_pk_mul_f32 {v(RING+e,2)}, {v(RING+e,2)}, {v(Z+e,2)}")
    for e in range(8): tl.e(f"v_cvt_pk_bf16_f32 v{RING+16+e}, v{RING+2*e}, v{RING+2*e+1}")
    unpack(tl, RING, RING + 16, 8)
    for e in range(0, 16, 2): tl.e(f"v_pk_add_f32 {v(RING+e,2)}, {v(RING+e,2)}, {v(TZ+e,2)}")
    for e in range(8): tl.e(f"v_cvt_pk_bf16_f32 v{RING+16+e}, v{RING+2*e}, v{RING+2*e+1}")
    tl.e(f"buffer_store_dwordx4 {v(RING+16,4)}, v{EA}, s[56:59], s{S_XOFF} offen")
    tl.e(f"buffer_store_dwordx4 {v(RING+20,4)}, v{EA}, s[56:59], s{S_XOFF} offen offset:16")
    if STAMP["on"]:
        tl.e("s_waitcnt vmcnt(0)")
        stamp(tl, 2, 13, vt=40)
        tl.e(f"v_mov_b32 v40, s{S_SPIN}")
        tl.e(f"v_mov_b32 v41, 1")
        tl.e(masked(f"s[{M_W0L0}:{M_W0L0+1}]", I(f"buffer_store_dwordx2 v[40:41], v42, s[92:95], s96 offen offset:16")))
    tl.e("F_END:")
    tl.e("s_endpgm")
    autonop(tl, gm)
    gm.extend(tl)

    def spin(n, pre_, ld, cmp_, and_, unit=1, once=()):
        z = Seq()
        z.e(f"F_SPIN{n}:")
        z.e(list(once))
        z.e(f"s_mov_b32 s{S_T}, {SPIN_LIMIT}")
        z.e(f"F_SPINL{n}:")
        z.e(pre_)
        z.e(ld)
        z.e(f"s_add_u32 s{S_SPIN}, s{S_SPIN}, {unit}")
        z.e("s_waitcnt vmcnt(0)")
        z.e(cmp_)
        z.e("s_nop 3")
        z.e(and_)
        z.e("s_cmp_eq_u64 vcc, -1")
        z.e(f"s_cbranch_scc1 F_BACK{n}")
        z.e(f"s_sub_u32 s{S_T}, s{S_T}, 1")
        z.e(f"s_cmp_lg_u32 s{S_T}, 0")
        z.e(f"s_cbranch_scc1 F_SPINL{n}")
        z.e(f"s_branch F_BACK{n}")
        return z
    sp1 = spin(1, stat_addr, [i_.text for i_ in stl], stat_cmp, stat_and, unit=1)
    sp2 = spin(2, [], [i_.text for i_ in keyl], key_cmp, key_and, unit=1 << 6)
    sp3 = spin(3, [], sjp.text, tag_cmp52(VSJ + 2), "s_and_b64 vcc, vcc, s[52:53]", unit=1 << 12)
    sp4 = spin(4, [], poll2.text, tag_cmp(VP2), "s_and_b64 vcc, vcc, s[42:43]", unit=1 << 18, once=leftpre)

    fb = Seq()
    fb.e("F_FB:")
    fb.e(f"s_mov_b32 s{S_FB}, -1")
    fb.e("s_waitcnt vmcnt(0)")
    for r in range(16): fb.e(f"v_mov_b32 v{NM+r}, 0xff800000")
    fb.e(f"v_lshrrev_b32 v{T}, 8, v{VL16}")
    fb.e(f"v_bfe_u32 v{T+1}, v{VL16}, 4, 4")
    fb.e(f"v_lshl_add_u32 v{T+2}, v{T}, 8, s{S_WB}")
    for j in range(4):
        fb.e(f"v_add_u32 v{T+3}, {4*j}, v{T}")
        fb.e(f"v_xor_b32 v{T+3}, v{T+3}, v{T+1}")
        fb.e(f"v_lshl_add_u32 v{KD+j}, v{T+3}, 4, v{T+2}")
    fb.e(f"s_mov_b32 s{S_K0}, 0")
    fb.e(f"s_mov_b32 s{S_K1}, 4096")
    fb.e("s_mov_b32 s52, 0")
    def lin_kv(z, isk, slot):
        for j in range(8):
            if j % 4 == 0:
                z.e(m0_set(slot * SLOT + (j >> 2) * 4096)); z.e("s_nop 0")
            z.e(k_dma(j) if isk else v_dma(j))
        r0_ = S_K0 if isk else S_V0
        z.e(f"s_add_u32 s{r0_}, s{r0_}, {SLOT}")
        z.e(f"s_add_u32 s{r0_+1}, s{r0_+1}, {SLOT}")
    fl = Seq()
    fl.e("F_FBT:")
    fl.e("s_barrier")
    lin_kv(fl, True, 0)
    fl.e("s_waitcnt vmcnt(0)")
    fl.e("s_barrier")
    fl.e("s_mov_b32 s53, 0")
    fi = Seq()
    fi.e("F_FBI:")
    for t in range(4): fi.e(k_read(0, 0, t))
    for t in range(4): fi.e(f"v_add_u32 v{KA+t}, 4096, v{KA+t}")
    fi.e("s_waitcnt lgkmcnt(0)")
    for qt in range(4):
        for t in range(4): fi.e(qk_mfma(0, qt, t, czero=True))
    fi.e("s_nop 7")
    for r in range(16): fi.e(f"v_max_f32 v{NM+r}, v{NM+r}, v{SR+r}")
    fi.e("s_add_u32 s53, s53, 1")
    fi.e("s_cmp_lt_u32 s53, 8")
    fi.e("s_cbranch_scc1 F_FBI")
    fo = Seq()
    for t in range(4): fo.e(f"v_subrev_u32 v{KA+t}, {SLOT}, v{KA+t}")
    fo.e("s_add_u32 s52, s52, 1")
    fo.e("s_cmp_lt_u32 s52, 16")
    fo.e("s_cbranch_scc1 F_FBT")
    fz = Seq()
    for qt in range(4):
        r = NM + 4 * qt
        fz.e(f"v_max3_f32 v{T+qt}, v{r}, v{r+1}, v{r+2}")
        fz.e(f"v_max_f32 v{T+qt}, v{T+qt}, v{r+3}")
    for sw in ("v_permlane16_swap_b32", "v_permlane32_swap_b32"):
        for qt in range(4): fz.e(f"v_mov_b32 v{T+4+qt}, v{T+qt}")
        for qt in range(4): fz.e(f"{sw} v{T+qt}, v{T+4+qt}")
        for qt in range(4): fz.e(f"v_max_f32 v{T+qt}, v{T+qt}, v{T+4+qt}")
    for qt in range(4):
        for r in range(4): fz.e(f"v_sub_f32 v{NM+4*qt+r}, 0, v{T+qt}")
    for r in range(128): fz.e(f"v_accvgpr_write_b32 {a(r)}, 0")
    fz.e(f"s_mov_b32 s{S_K0}, 0")
    fz.e(f"s_mov_b32 s{S_K1}, 4096")
    fz.e(f"s_mov_b32 s{S_V0}, 0")
    fz.e(f"s_mov_b32 s{S_V1}, 4096")
    fz.e("s_barrier")
    lin_kv(fz, True, 0); lin_kv(fz, True, 1); lin_kv(fz, False, 2)
    fz.e("s_waitcnt vmcnt(0)")
    fz.e("s_barrier")
    for t in range(4): fz.e(k_read(0, 0, t))
    fz.e("s_branch F_QK0")

    L = list
    per = L(b0) + L(b1)
    lo = []
    for j_ in (ja, jb, j1, j2, j3_): lo += L(b0) + b1a + L(jd) + L(j_) + b1b
    lo += per
    main = L(q) + L(e0) + L(mx) + L(e1) + lo + L(bl) + L(ep) + L(sm) + L(gm)
    main2 = L(e1) + per + L(bl) + L(ep) + L(sm) + L(sp4) + L(gm)
    fbt = (L(e0) + L(mx) + L(e1) + per + L(bl) + L(ep) + L(fb) + L(fl) + L(fi) + L(fi) + L(fo) + L(fl) + L(fi) + L(fo) + L(fz)
           + L(e0) + L(e1) + per)
    resolve_waits([main, fbt])
    errs = validate(main, "main") + validate(fbt, "fb") + validate(main2, "main2")
    for z in (sp1, sp2, sp3): errs += validate(z, "spin")
    text = "".join(z.text() for z in (q, e0, mx, e1, b0, b1, bl, ep, sm, gm, jd, ja, jb, j1, j2, j3_, sp1, sp2, sp3, sp4,
                                      fb, fl, fi, fo, fz))
    info = dict(qtail=qtail, etail=etail, gtail=gtail, gready=gready - G[24], gleft=gleft / 16, gstream=gstream / 16,
                gbar=gbar / 16, gend=gend / 16, q=qinfo, j=(len(ja), len(jb), len(j1), len(j2), len(j3_)), nseam=len(items))
    return text, errs, dict(vgpr=256, agpr=256, lds=5 * SLOT, grid=256, block=256, info=info)


def np_blk(G, g):
    for n in range(len(G) - 1):
        if g < G[n + 1]: return n + (g - G[n]) / (G[n + 1] - G[n])
    return len(G) - 1


NAME = "recurrent_scan__mha_block_cached__moe_arch_mod__prompt"
def build(out, stamps=False, fine=False, **kw):
    STAMP["on"] = stamps; STAMP["fine"] = fine
    ref = open(f"cdna_kernels/{NAME}.s.ref").read().split("\n")
    head = [l for l in ref if l.startswith(";") and "@launch" not in l]
    t, e, m = gen_h(**kw)
    for x in e[:60]: print("VALIDATE:", x)
    assert not e
    head.append(f"; @launch grid=({m['grid']},1,1) block=({m['block']},1,1) lds={m['lds']}")
    tt, dd = kernel_text(NAME + "_kernel", t, m["vgpr"], m["agpr"])
    open(out, "w").write("\n".join(head) + '\n.amdgcn_target "amdgcn-amd-amdhsa--gfx950"\n' + tt + dd)
    return m["info"]

if __name__ == "__main__":
    print(build("h.s"))
    build("hst.s", stamps=True)
    build("hsf.s", stamps=True, fine=True)
```
